```python
import torch

def _softmax(x, axis=-1):
    return torch.softmax(x, dim=axis)
def _gelu(x):
    return torch.nn.functional.gelu(x, approximate="tanh")
def _silu(x):
    return torch.nn.functional.silu(x)
def _sigmoid(x):
    return torch.sigmoid(x)
def _layernorm(x, axis=-1, eps=1e-5):
    m = x.mean(dim=axis, keepdim=True)
    v = x.var(dim=axis, keepdim=True, unbiased=False)
    return (x - m) / torch.sqrt(v + eps)
def _scatter_add(tgt, idx, src, axis=0):
    return tgt.clone().index_add_(axis, idx, src)
def _segment_sum(src, seg, n):
    out = torch.zeros((n,) + src.shape[1:], dtype=src.dtype)
    return out.index_add_(0, seg, src)
def _pad(x, pw):
    flat = tuple(v for pair in reversed(pw) for v in pair)
    return torch.nn.functional.pad(x, flat)

kernel_name = 'standalone__channel_attn_se__vision'

def setup_inputs():

    _w = (lambda a: (lambda t: t.to(torch.bfloat16) if t.is_floating_point() else t)(torch.as_tensor(a)))
    H = W = 512
    C = 96
    r = max(C // 16, 4)
    return {
        "x": _w((lambda *s: torch.randn(*s, dtype=torch.bfloat16) * 3.2)(1, H, W, C)),
        "w_down": _w((lambda *s: torch.randn(*s, dtype=torch.bfloat16) * 12.8)(C, r)),
        "w_up": _w((lambda *s: torch.randn(*s, dtype=torch.bfloat16) * 3.2)(r, C)),
    }

def reference(x, w_down, w_up):
    s = x.mean(axis=(1, 2))
    h = _silu(torch.einsum('bc,cr->br', s, w_down))
    g = _sigmoid(torch.einsum('br,rc->bc', h, w_up))
    return x * g[:, None, None, :]
```

```python
import sys

KNAME = "standalone__channel_attn_se__vision_kernel"
NWG = 256
WG_BYTES = 196608
WAVE_BYTES = 12288
NLOAD = 16
NREP = 16
REP_STRIDE = 512
CNT_BASE = 8192
CNT_STRIDE = 128
LOAD_FLAGS = ""
STORE_FLAGS = ""

def gen(load_flags=LOAD_FLAGS, store_flags=STORE_FLAGS, poll_at=11):
    L = []
    A = L.append
    A("; @launch grid=(%d,1,1) block=(1024,1,1) lds=1024" % NWG)
    A('.amdgcn_target "amdgcn-amd-amdhsa--gfx950"')
    A(".text")
    A(".globl %s" % KNAME)
    A(".p2align 8")
    A(".type %s,@function" % KNAME)
    A("%s:" % KNAME)
    A("    s_cmp_ge_u32 s2, %d" % NWG)
    A("    s_cbranch_scc1 L_end")
    A("    s_load_dwordx4 s[4:7], s[0:1], 0")
    A("    s_load_dwordx4 s[8:11], s[0:1], 16")
    A("    s_load_dwordx4 s[12:15], s[0:1], 32")
    A("    v_lshrrev_b32 v1, 6, v0")
    A("    v_and_b32 v2, 63, v0")
    A("    v_mul_u32_u24 v3, 12, v2")
    A("    v_readfirstlane_b32 s26, v1")
    A("    v_and_b32 v14, 15, v2")
    A("    v_mov_b32 v15, 0x3f80")
    A("    v_mov_b32 v13, 0x3f800000")
    for r in range(4):
        A("    v_mov_b32 v%d, 0" % (4 + r))
    for r in range(4):
        A("    v_cmp_eq_u32 vcc, %d, v14" % (2 * r))
        A("    s_nop 1")
        A("    v_cndmask_b32 v%d, v%d, v15, vcc" % (4 + r, 4 + r))
        A("    v_cmp_eq_u32 vcc, %d, v14" % (2 * r + 1))
        A("    s_nop 1")
        A("    v_cndmask_b32 v%d, v%d, v13, vcc" % (4 + r, 4 + r))
    for r in range(4):
        A("    v_mov_b32 v%d, 0" % (8 + r))
    for i in range(NLOAD):
        A("    v_mov_b32 v%d, 0" % (16 + 4 * i + 3))
    A("    s_mul_i32 s27, s26, %d" % WAVE_BYTES)
    A("    v_add_u32 v3, s27, v3")
    A("    s_mul_i32 s28, s2, %d" % WG_BYTES)
    A("    s_mov_b32 s24, 4608")
    A("    s_mov_b32 s25, 9216")
    A("    s_waitcnt lgkmcnt(0)")
    A("    s_add_u32 s16, s4, s28")
    A("    s_addc_u32 s17, s5, 0")
    A("    s_mov_b32 s18, %d" % WG_BYTES)
    A("    s_mov_b32 s19, 0x00020000")
    A("    s_add_u32 s20, s10, s28")
    A("    s_addc_u32 s21, s11, 0")
    A("    s_mov_b32 s22, %d" % WG_BYTES)
    A("    s_mov_b32 s23, 0x00020000")
    A("    s_cmp_lg_u32 s2, 0")
    A("    s_cbranch_scc1 L_nozero")
    A("    v_lshlrev_b32 v14, 4, v0")
    A("    v_mov_b32 v96, 0")
    A("    v_mov_b32 v97, 0")
    A("    v_mov_b32 v98, 0")
    A("    v_mov_b32 v99, 0")
    A("    global_store_dwordx4 v14, v[96:99], s[14:15] sc1")
    A("L_nozero:")
    A("    s_cmp_lg_u32 s26, 0")
    A("    s_cbranch_scc1 L_noweights")
    A("    s_mov_b32 s32, s6")
    A("    s_mov_b32 s33, s7")
    A("    s_mov_b32 s34, 1152")
    A("    s_mov_b32 s35, 0x00020000")
    A("    s_mov_b32 s36, s8")
    A("    s_mov_b32 s37, s9")
    A("    s_mov_b32 s38, 1152")
    A("    s_mov_b32 s39, 0x00020000")
    A("    v_mul_u32_u24 v14, 24, v2")
    A("    v_lshlrev_b32 v15, 2, v2")
    A("    buffer_load_dwordx3 v[80:82], v14, s[32:35], 0 offen")
    A("    buffer_load_dwordx3 v[84:86], v14, s[32:35], 0 offen offset:12")
    for r in range(6):
        A("    buffer_load_dword v%d, v15, s[36:39], 0 offen offset:%d" % (88 + r, 192 * r))
    A("L_noweights:")
    for i in range(NLOAD):
        so = ["0", "s24", "s25"][i // 6]
        A("    buffer_load_dwordx3 v[%d:%d], v3, s[16:19], %s offen offset:%d%s"
          % (16 + 4 * i, 16 + 4 * i + 2, so, 768 * (i % 6), load_flags))
    A("    v_lshlrev_b32 v12, 2, v0")
    A("    v_mov_b32 v14, 0")
    A("    v_cmp_gt_u32 vcc, 128, v0")
    A("    s_and_saveexec_b64 s[30:31], vcc")
    A("    ds_write_b32 v12, v14")
    A("    s_mov_b64 exec, s[30:31]")
    A("    s_cmp_lg_u32 s2, 0")
    A("    s_cbranch_scc1 L_nozwait")
    A("    s_waitcnt vmcnt(%d)" % NLOAD)
    A("L_nozwait:")
    A("    s_waitcnt lgkmcnt(0)")
    A("    s_barrier")
    A("    s_or_b32 s29, s2, s26")
    A("    s_cmp_lg_u32 s29, 0")
    A("    s_cbranch_scc1 L_noflag")
    A("    v_mov_b32 v14, 0")
    A("    v_mov_b32 v15, 1")
    A("    s_mov_b64 s[30:31], exec")
    A("    s_mov_b64 exec, 1")
    A("    global_atomic_add v14, v15, s[12:13] sc1")
    A("    s_mov_b64 exec, s[30:31]")
    A("L_noflag:")
    A("    v_and_b32 v14, 15, v2")
    A("    v_mul_u32_u24 v12, 24, v14")
    A("    v_lshrrev_b32 v14, 4, v2")
    A("    v_lshl_add_u32 v12, v14, 4, v12")
    A("    v_mov_b32 v14, 0")
    extra = 0
    for i in range(NLOAD):
        A("    s_waitcnt vmcnt(%d)" % (NLOAD - 1 - i + extra))
        A("    v_mfma_f32_16x16x32_bf16 v[8:11], v[4:7], v[%d:%d], v[8:11]" % (16 + 4 * i, 16 + 4 * i + 3))
        if i == poll_at:
            A("    global_load_dword v13, v14, s[12:13] sc1")
            extra = 1
    A("    s_nop 7")
    A("    s_mov_b32 exec_hi, 0")
    A("    ds_add_f32 v12, v8")
    A("    ds_add_f32 v12, v9 offset:4")
    A("    s_mov_b32 exec_lo, 0xffff")
    A("    ds_add_f32 v12, v10 offset:8")
    A("    ds_add_f32 v12, v11 offset:12")
    A("    s_mov_b64 exec, -1")
    A("    s_waitcnt lgkmcnt(0)")
    A("    s_barrier")
    A("    s_cmp_lg_u32 s26, 0")
    A("    s_cbranch_scc1 L_waitg")
    A("    s_waitcnt vmcnt(0)")
    A("    v_lshlrev_b32 v12, 2, v2")
    A("    ds_read_b32 v94, v12")
    A("    ds_read_b32 v95, v12 offset:256")
    A("    s_mov_b32 s31, 0")
    A("L_flagspin:")
    A("    v_readfirstlane_b32 s30, v13")
    A("    s_cmp_lg_u32 s30, 0")
    A("    s_cbranch_scc1 L_flagok")
    A("    s_add_u32 s31, s31, 1")
    A("    s_cmp_gt_u32 s31, 0x40000")
    A("    s_cbranch_scc1 L_flagok")
    A("    s_sleep 1")
    A("    global_load_dword v13, v14, s[12:13] sc1")
    A("    s_waitcnt vmcnt(0)")
    A("    s_branch L_flagspin")
    A("L_flagok:")
    A("    s_and_b32 s29, s2, %d" % (NREP - 1))
    A("    s_mul_i32 s30, s29, %d" % REP_STRIDE)
    A("    v_add_u32 v15, s30, v12")
    A("    s_waitcnt lgkmcnt(0)")
    A("    global_atomic_add_f32 v15, v94, s[14:15] sc1")
    A("    s_mov_b32 exec_hi, 0")
    A("    global_atomic_add_f32 v15, v95, s[14:15] offset:256 sc1")
    A("    s_mov_b64 exec, -1")
    A("    s_mul_i32 s30, s29, %d" % CNT_STRIDE)
    A("    s_add_u32 s30, s30, %d" % CNT_BASE)
    A("    v_mov_b32 v14, s30")
    A("    v_mov_b32 v15, 1")
    A("    v_lshlrev_b32 v12, 7, v2")
    A("    v_add_u32 v12, %d, v12" % CNT_BASE)
    A("    s_waitcnt vmcnt(0)")
    A("    s_mov_b64 exec, 1")
    A("    global_atomic_add v14, v15, s[14:15] sc1")
    A("    s_mov_b32 exec_lo, 0xffff")
    A("    s_mov_b32 s31, 0")
    A("L_poll:")
    A("    global_load_dword v13, v12, s[14:15] sc1")
    A("    s_waitcnt vmcnt(0)")
    A("    v_cmp_ne_u32 vcc, %d, v13" % (NWG // NREP))
    A("    s_cbranch_vccz L_polldone")
    A("    s_add_u32 s31, s31, 1")
    A("    s_cmp_gt_u32 s31, 0x40000")
    A("    s_cbranch_scc1 L_polldone")
    A("    s_sleep 1")
    A("    s_branch L_poll")
    A("L_polldone:")
    A("    s_mov_b64 exec, -1")
    A("    v_lshlrev_b32 v12, 3, v2")
    A("    v_add_u32 v14, 4096, v12")
    for r in range(NREP):
        base = "v12" if r < 8 else "v14"
        A("    global_load_dwordx2 v[%d:%d], %s, s[14:15] offset:%d sc1"
          % (96 + 2 * r, 97 + 2 * r, base, REP_STRIDE * (r % 8)))
    A("    s_waitcnt vmcnt(0)")
    step = 1
    while step < NREP:
        for r in range(0, NREP, 2 * step):
            A("    v_add_f32 v%d, v%d, v%d" % (96 + 2 * r, 96 + 2 * r, 96 + 2 * (r + step)))
            A("    v_add_f32 v%d, v%d, v%d" % (97 + 2 * r, 97 + 2 * r, 97 + 2 * (r + step)))
        step *= 2
    A("    v_mul_f32 v96, 0x36800000, v96")
    A("    v_mul_f32 v97, 0x36800000, v97")
    A("    v_cvt_pk_bf16_f32 v98, v96, v97")
    A("    v_lshlrev_b32 v96, 16, v98")
    A("    v_and_b32 v97, 0xffff0000, v98")
    for r in range(6):
        src0 = 80 + r // 2
        src1 = 84 + r // 2
        if r % 2 == 0:
            A("    v_lshlrev_b32 v106, 16, v%d" % src0)
            A("    v_lshlrev_b32 v107, 16, v%d" % src1)
        else:
            A("    v_and_b32 v106, 0xffff0000, v%d" % src0)
            A("    v_and_b32 v107, 0xffff0000, v%d" % src1)
        A("    v_mul_f32 v%d, v96, v106" % (100 + r))
        A("    v_fmac_f32 v%d, v97, v107" % (100 + r))
    for st in (1, 2, 4, 8):
        for r in range(6):
            A("    v_add_f32_dpp v%d, v%d, v%d row_ror:%d row_mask:0xf bank_mask:0xf"
              % (106 + r, 100 + r, 100 + r, st))
        A("    s_nop 1")
        for r in range(6):
            A("    v_mov_b32 v%d, v%d" % (100 + r, 106 + r))
        A("    s_nop 1")
    for op in ("v_permlane16_swap_b32", "v_permlane32_swap_b32"):
        for r in range(6):
            A("    v_mov_b32 v%d, v%d" % (106 + r, 100 + r))
        A("    s_nop 1")
        for r in range(6):
            A("    %s v%d, v%d" % (op, 100 + r, 106 + r))
        A("    s_nop 1")
        for r in range(6):
            A("    v_add_f32 v%d, v%d, v%d" % (100 + r, 100 + r, 106 + r))
    A("    s_mov_b32 s30, 0xbfb8aa3b")
    for r in range(0, 6, 2):
        A("    v_cvt_pk_bf16_f32 v106, v%d, v%d" % (100 + r, 101 + r))
        A("    v_lshlrev_b32 v%d, 16, v106" % (100 + r))
        A("    v_and_b32 v%d, 0xffff0000, v106" % (101 + r))
    for r in range(6):
        A("    v_mul_f32 v%d, s30, v%d" % (106 + r, 100 + r))
    for r in range(6):
        A("    v_exp_f32 v%d, v%d" % (106 + r, 106 + r))
    A("    s_nop 0")
    for r in range(6):
        A("    v_add_f32 v%d, 1.0, v%d" % (106 + r, 106 + r))
    for r in range(6):
        A("    v_rcp_f32 v%d, v%d" % (106 + r, 106 + r))
    A("    s_nop 0")
    for r in range(6):
        A("    v_mul_f32 v%d, v%d, v%d" % (100 + r, 100 + r, 106 + r))
    for r in range(0, 6, 2):
        A("    v_cvt_pk_bf16_f32 v106, v%d, v%d" % (100 + r, 101 + r))
        A("    v_lshlrev_b32 v%d, 16, v106" % (100 + r))
        A("    v_and_b32 v%d, 0xffff0000, v106" % (101 + r))
    A("    v_mov_b32 v96, 0")
    A("    v_mov_b32 v97, 0")
    for r in range(6):
        A("    v_lshlrev_b32 v106, 16, v%d" % (88 + r))
        A("    v_and_b32 v107, 0xffff0000, v%d" % (88 + r))
        A("    v_fmac_f32 v96, v%d, v106" % (100 + r))
        A("    v_fmac_f32 v97, v%d, v107" % (100 + r))
    A("    v_cvt_pk_bf16_f32 v98, v96, v97")
    A("    v_lshlrev_b32 v96, 16, v98")
    A("    v_and_b32 v97, 0xffff0000, v98")
    A("    v_mul_f32 v96, s30, v96")
    A("    v_mul_f32 v97, s30, v97")
    A("    v_exp_f32 v96, v96")
    A("    v_exp_f32 v97, v97")
    A("    s_nop 0")
    A("    v_add_f32 v96, 1.0, v96")
    A("    v_add_f32 v97, 1.0, v97")
    A("    v_rcp_f32 v96, v96")
    A("    v_rcp_f32 v97, v97")
    A("    s_nop 0")
    A("    v_cvt_pk_bf16_f32 v98, v96, v97")
    A("    v_lshlrev_b32 v96, 16, v98")
    A("    v_and_b32 v97, 0xffff0000, v98")
    A("    v_lshlrev_b32 v12, 3, v2")
    A("    s_mov_b32 exec_hi, 0xffff")
    A("    ds_write_b64 v12, v[96:97] offset:512")
    A("    s_mov_b64 exec, -1")
    A("    s_waitcnt lgkmcnt(0)")
    A("L_waitg:")
    A("    s_barrier")
    A("    v_and_b32 v14, 15, v2")
    A("    v_mul_u32_u24 v12, 24, v14")
    A("    ds_read_b64 v[96:97], v12 offset:512")
    A("    ds_read_b64 v[98:99], v12 offset:520")
    A("    ds_read_b64 v[100:101], v12 offset:528")
    A("    s_waitcnt lgkmcnt(0)")
    for i in range(NLOAD):
        b = 16 + 4 * i
        for d in range(3):
            A("    v_lshlrev_b32 v102, 16, v%d" % (b + d))
            A("    v_and_b32 v103, 0xffff0000, v%d" % (b + d))
            A("    v_mul_f32 v102, v102, v%d" % (96 + 2 * d))
            A("    v_mul_f32 v103, v103, v%d" % (97 + 2 * d))
            A("    v_cvt_pk_bf16_f32 v%d, v102, v103" % (b + d))
        so = ["0", "s24", "s25"][i // 6]
        A("    buffer_store_dwordx3 v[%d:%d], v3, s[20:23], %s offen offset:%d%s"
          % (b, b + 2, so, 768 * (i % 6), store_flags))
    A("L_end:")
    A("    s_endpgm")
    A('.section .rodata,"a"')
    A(".p2align 6")
    A(".amdhsa_kernel %s" % KNAME)
    A("  .amdhsa_next_free_vgpr 128")
    A("  .amdhsa_next_free_sgpr 48")
    A("  .amdhsa_accum_offset 128")
    A("  .amdhsa_group_segment_fixed_size 0")
    A("  .amdhsa_kernarg_size 48")
    A("  .amdhsa_user_sgpr_count 2")
    A("  .amdhsa_user_sgpr_kernarg_segment_ptr 1")
    A("  .amdhsa_system_sgpr_workgroup_id_x 1")
    A(".end_amdhsa_kernel")
    return "\n".join(L) + "\n"

if __name__ == "__main__":
    out = sys.argv[1] if len(sys.argv) > 1 else "standalone__channel_attn_se__vision.s"
    open(out, "w").write(gen())
```

```python
import sys

KNAME = "standalone__channel_attn_se__vision_kernel"
NWG = 256
WG_BYTES = 196608
WAVE_BYTES = 12288
NLOAD = 16
NREP = 16
REP_STRIDE = 512
CNT_BASE = 8192
CNT_STRIDE = 128
LOAD_FLAGS = ""
STORE_FLAGS = ""

def gen(load_flags=LOAD_FLAGS, store_flags=STORE_FLAGS, poll_at=11, stamps=False):
    L = []
    A = L.append
    def stamp(slot):
        if not stamps:
            return
        A("    s_memrealtime s[40:41]")
        A("    s_waitcnt lgkmcnt(0)")
        A("    s_not_b32 s41, s40")
        A("    s_mov_b64 s[42:43], exec")
        A("    s_mov_b64 exec, 1")
        A("    v_mov_b32 v110, s40")
        A("    v_mov_b32 v111, s41")
        A("    v_mov_b32 v112, 0")
        A("    global_atomic_umax v112, v110, s[12:13] offset:%d sc1" % (4 * slot))
        A("    global_atomic_umax v112, v111, s[12:13] offset:%d sc1" % (4 * slot + 4))
        A("    s_mov_b64 exec, s[42:43]")
    A("; @launch grid=(%d,1,1) block=(1024,1,1) lds=1024" % NWG)
    A('.amdgcn_target "amdgcn-amd-amdhsa--gfx950"')
    A(".text")
    A(".globl %s" % KNAME)
    A(".p2align 8")
    A(".type %s,@function" % KNAME)
    A("%s:" % KNAME)
    A("    s_cmp_ge_u32 s2, %d" % NWG)
    A("    s_cbranch_scc1 L_end")
    A("    s_load_dwordx4 s[4:7], s[0:1], 0")
    A("    s_load_dwordx4 s[8:11], s[0:1], 16")
    A("    s_load_dwordx4 s[12:15], s[0:1], 32")
    A("    v_lshrrev_b32 v1, 6, v0")
    A("    v_and_b32 v2, 63, v0")
    A("    v_mul_u32_u24 v3, 12, v2")
    A("    v_readfirstlane_b32 s26, v1")
    A("    v_and_b32 v14, 15, v2")
    A("    v_mov_b32 v15, 0x3f80")
    A("    v_mov_b32 v13, 0x3f800000")
    for r in range(4):
        A("    v_mov_b32 v%d, 0" % (4 + r))
    for r in range(4):
        A("    v_cmp_eq_u32 vcc, %d, v14" % (2 * r))
        A("    s_nop 1")
        A("    v_cndmask_b32 v%d, v%d, v15, vcc" % (4 + r, 4 + r))
        A("    v_cmp_eq_u32 vcc, %d, v14" % (2 * r + 1))
        A("    s_nop 1")
        A("    v_cndmask_b32 v%d, v%d, v13, vcc" % (4 + r, 4 + r))
    for r in range(4):
        A("    v_mov_b32 v%d, 0" % (8 + r))
    for i in range(NLOAD):
        A("    v_mov_b32 v%d, 0" % (16 + 4 * i + 3))
    A("    s_mul_i32 s27, s26, %d" % WAVE_BYTES)
    A("    v_add_u32 v3, s27, v3")
    A("    s_mul_i32 s28, s2, %d" % WG_BYTES)
    A("    s_mov_b32 s24, 4608")
    A("    s_mov_b32 s25, 9216")
    A("    s_waitcnt lgkmcnt(0)")
    A("    s_add_u32 s16, s4, s28")
    A("    s_addc_u32 s17, s5, 0")
    A("    s_mov_b32 s18, %d" % WG_BYTES)
    A("    s_mov_b32 s19, 0x00020000")
    A("    s_add_u32 s20, s10, s28")
    A("    s_addc_u32 s21, s11, 0")
    A("    s_mov_b32 s22, %d" % WG_BYTES)
    A("    s_mov_b32 s23, 0x00020000")
    if stamps:
        A("    s_cmp_lg_u32 s26, 0")
        A("    s_cbranch_scc1 L_nostamp0")
        stamp(2)
        A("L_nostamp0:")
    A("    s_cmp_lg_u32 s2, 0")
    A("    s_cbranch_scc1 L_nozero")
    A("    v_lshlrev_b32 v14, 4, v0")
    A("    v_mov_b32 v96, 0")
    A("    v_mov_b32 v97, 0")
    A("    v_mov_b32 v98, 0")
    A("    v_mov_b32 v99, 0")
    A("    global_store_dwordx4 v14, v[96:99], s[14:15] sc1")
    A("L_nozero:")
    A("    s_cmp_lg_u32 s26, 0")
    A("    s_cbranch_scc1 L_noweights")
    A("    s_mov_b32 s32, s6")
    A("    s_mov_b32 s33, s7")
    A("    s_mov_b32 s34, 1152")
    A("    s_mov_b32 s35, 0x00020000")
    A("    s_mov_b32 s36, s8")
    A("    s_mov_b32 s37, s9")
    A("    s_mov_b32 s38, 1152")
    A("    s_mov_b32 s39, 0x00020000")
    A("    v_mul_u32_u24 v14, 24, v2")
    A("    v_lshlrev_b32 v15, 2, v2")
    A("    buffer_load_dwordx3 v[80:82], v14, s[32:35], 0 offen")
    A("    buffer_load_dwordx3 v[84:86], v14, s[32:35], 0 offen offset:12")
    for r in range(6):
        A("    buffer_load_dword v%d, v15, s[36:39], 0 offen offset:%d" % (88 + r, 192 * r))
    A("L_noweights:")
    for i in range(NLOAD):
        so = ["0", "s24", "s25"][i // 6]
        A("    buffer_load_dwordx3 v[%d:%d], v3, s[16:19], %s offen offset:%d%s"
          % (16 + 4 * i, 16 + 4 * i + 2, so, 768 * (i % 6), load_flags))
    A("    v_lshlrev_b32 v12, 2, v0")
    A("    v_mov_b32 v14, 0")
    A("    v_cmp_gt_u32 vcc, 128, v0")
    A("    s_and_saveexec_b64 s[30:31], vcc")
    A("    ds_write_b32 v12, v14")
    A("    s_mov_b64 exec, s[30:31]")
    A("    s_cmp_lg_u32 s2, 0")
    A("    s_cbranch_scc1 L_nozwait")
    A("    s_waitcnt vmcnt(%d)" % NLOAD)
    A("L_nozwait:")
    A("    s_waitcnt lgkmcnt(0)")
    A("    s_barrier")
    A("    s_or_b32 s29, s2, s26")
    A("    s_cmp_lg_u32 s29, 0")
    A("    s_cbranch_scc1 L_noflag")
    A("    v_mov_b32 v14, 0")
    A("    v_mov_b32 v15, 1")
    A("    s_mov_b64 s[30:31], exec")
    A("    s_mov_b64 exec, 1")
    A("    global_atomic_add v14, v15, s[12:13] sc1")
    A("    s_mov_b64 exec, s[30:31]")
    A("L_noflag:")
    A("    v_and_b32 v14, 15, v2")
    A("    v_mul_u32_u24 v12, 24, v14")
    A("    v_lshrrev_b32 v14, 4, v2")
    A("    v_lshl_add_u32 v12, v14, 4, v12")
    A("    v_mov_b32 v14, 0")
    extra = 0
    for i in range(NLOAD):
        A("    s_waitcnt vmcnt(%d)" % (NLOAD - 1 - i + extra))
        A("    v_mfma_f32_16x16x32_bf16 v[8:11], v[4:7], v[%d:%d], v[8:11]" % (16 + 4 * i, 16 + 4 * i + 3))
        if i == poll_at:
            A("    global_load_dword v13, v14, s[12:13] sc1")
            extra = 1
    A("    s_nop 7")
    A("    s_mov_b32 exec_hi, 0")
    A("    ds_add_f32 v12, v8")
    A("    ds_add_f32 v12, v9 offset:4")
    A("    s_mov_b32 exec_lo, 0xffff")
    A("    ds_add_f32 v12, v10 offset:8")
    A("    ds_add_f32 v12, v11 offset:12")
    A("    s_mov_b64 exec, -1")
    A("    s_waitcnt lgkmcnt(0)")
    A("    s_barrier")
    A("    s_cmp_lg_u32 s26, 0")
    A("    s_cbranch_scc1 L_waitg")
    A("    s_waitcnt vmcnt(0)")
    stamp(4)
    A("    v_lshlrev_b32 v12, 2, v2")
    A("    ds_read_b32 v94, v12")
    A("    ds_read_b32 v95, v12 offset:256")
    A("    s_mov_b32 s31, 0")
    A("L_flagspin:")
    A("    v_readfirstlane_b32 s30, v13")
    A("    s_cmp_lg_u32 s30, 0")
    A("    s_cbranch_scc1 L_flagok")
    A("    s_add_u32 s31, s31, 1")
    A("    s_cmp_gt_u32 s31, 0x40000")
    A("    s_cbranch_scc1 L_flagok")
    A("    s_sleep 1")
    A("    global_load_dword v13, v14, s[12:13] sc1")
    A("    s_waitcnt vmcnt(0)")
    A("    s_branch L_flagspin")
    A("L_flagok:")
    A("    s_and_b32 s29, s2, %d" % (NREP - 1))
    A("    s_mul_i32 s30, s29, %d" % REP_STRIDE)
    A("    v_add_u32 v15, s30, v12")
    A("    s_waitcnt lgkmcnt(0)")
    A("    global_atomic_add_f32 v15, v94, s[14:15] sc1")
    A("    s_mov_b32 exec_hi, 0")
    A("    global_atomic_add_f32 v15, v95, s[14:15] offset:256 sc1")
    A("    s_mov_b64 exec, -1")
    A("    s_mul_i32 s30, s29, %d" % CNT_STRIDE)
    A("    s_add_u32 s30, s30, %d" % CNT_BASE)
    A("    v_mov_b32 v14, s30")
    A("    v_mov_b32 v15, 1")
    A("    v_lshlrev_b32 v12, 7, v2")
    A("    v_add_u32 v12, %d, v12" % CNT_BASE)
    A("    s_waitcnt vmcnt(0)")
    A("    s_mov_b64 exec, 1")
    A("    global_atomic_add v14, v15, s[14:15] sc1")
    A("    s_mov_b32 exec_lo, 0xffff")
    A("    s_mov_b32 s31, 0")
    A("L_poll:")
    A("    global_load_dword v13, v12, s[14:15] sc1")
    A("    s_waitcnt vmcnt(0)")
    A("    v_cmp_ne_u32 vcc, %d, v13" % (NWG // NREP))
    A("    s_cbranch_vccz L_polldone")
    A("    s_add_u32 s31, s31, 1")
    A("    s_cmp_gt_u32 s31, 0x40000")
    A("    s_cbranch_scc1 L_polldone")
    A("    s_sleep 1")
    A("    s_branch L_poll")
    A("L_polldone:")
    A("    s_mov_b64 exec, -1")
    stamp(6)
    A("    v_lshlrev_b32 v12, 3, v2")
    A("    v_add_u32 v14, 4096, v12")
    for r in range(NREP):
        base = "v12" if r < 8 else "v14"
        A("    global_load_dwordx2 v[%d:%d], %s, s[14:15] offset:%d sc1"
          % (96 + 2 * r, 97 + 2 * r, base, REP_STRIDE * (r % 8)))
    A("    s_waitcnt vmcnt(0)")
    step = 1
    while step < NREP:
        for r in range(0, NREP, 2 * step):
            A("    v_add_f32 v%d, v%d, v%d" % (96 + 2 * r, 96 + 2 * r, 96 + 2 * (r + step)))
            A("    v_add_f32 v%d, v%d, v%d" % (97 + 2 * r, 97 + 2 * r, 97 + 2 * (r + step)))
        step *= 2
    A("    v_mul_f32 v96, 0x36800000, v96")
    A("    v_mul_f32 v97, 0x36800000, v97")
    A("    v_cvt_pk_bf16_f32 v98, v96, v97")
    A("    v_lshlrev_b32 v96, 16, v98")
    A("    v_and_b32 v97, 0xffff0000, v98")
    for r in range(6):
        src0 = 80 + r // 2
        src1 = 84 + r // 2
        if r % 2 == 0:
            A("    v_lshlrev_b32 v106, 16, v%d" % src0)
            A("    v_lshlrev_b32 v107, 16, v%d" % src1)
        else:
            A("    v_and_b32 v106, 0xffff0000, v%d" % src0)
            A("    v_and_b32 v107, 0xffff0000, v%d" % src1)
        A("    v_mul_f32 v%d, v96, v106" % (100 + r))
        A("    v_fmac_f32 v%d, v97, v107" % (100 + r))
    for st in (1, 2, 4, 8):
        for r in range(6):
            A("    v_add_f32_dpp v%d, v%d, v%d row_ror:%d row_mask:0xf bank_mask:0xf"
              % (106 + r, 100 + r, 100 + r, st))
        A("    s_nop 1")
        for r in range(6):
            A("    v_mov_b32 v%d, v%d" % (100 + r, 106 + r))
        A("    s_nop 1")
    for op in ("v_permlane16_swap_b32", "v_permlane32_swap_b32"):
        for r in range(6):
            A("    v_mov_b32 v%d, v%d" % (106 + r, 100 + r))
        A("    s_nop 1")
        for r in range(6):
            A("    %s v%d, v%d" % (op, 100 + r, 106 + r))
        A("    s_nop 1")
        for r in range(6):
            A("    v_add_f32 v%d, v%d, v%d" % (100 + r, 100 + r, 106 + r))
    A("    s_mov_b32 s30, 0xbfb8aa3b")
    for r in range(0, 6, 2):
        A("    v_cvt_pk_bf16_f32 v106, v%d, v%d" % (100 + r, 101 + r))
        A("    v_lshlrev_b32 v%d, 16, v106" % (100 + r))
        A("    v_and_b32 v%d, 0xffff0000, v106" % (101 + r))
    for r in range(6):
        A("    v_mul_f32 v%d, s30, v%d" % (106 + r, 100 + r))
    for r in range(6):
        A("    v_exp_f32 v%d, v%d" % (106 + r, 106 + r))
    A("    s_nop 0")
    for r in range(6):
        A("    v_add_f32 v%d, 1.0, v%d" % (106 + r, 106 + r))
    for r in range(6):
        A("    v_rcp_f32 v%d, v%d" % (106 + r, 106 + r))
    A("    s_nop 0")
    for r in range(6):
        A("    v_mul_f32 v%d, v%d, v%d" % (100 + r, 100 + r, 106 + r))
    for r in range(0, 6, 2):
        A("    v_cvt_pk_bf16_f32 v106, v%d, v%d" % (100 + r, 101 + r))
        A("    v_lshlrev_b32 v%d, 16, v106" % (100 + r))
        A("    v_and_b32 v%d, 0xffff0000, v106" % (101 + r))
    A("    v_mov_b32 v96, 0")
    A("    v_mov_b32 v97, 0")
    for r in range(6):
        A("    v_lshlrev_b32 v106, 16, v%d" % (88 + r))
        A("    v_and_b32 v107, 0xffff0000, v%d" % (88 + r))
        A("    v_fmac_f32 v96, v%d, v106" % (100 + r))
        A("    v_fmac_f32 v97, v%d, v107" % (100 + r))
    A("    v_cvt_pk_bf16_f32 v98, v96, v97")
    A("    v_lshlrev_b32 v96, 16, v98")
    A("    v_and_b32 v97, 0xffff0000, v98")
    A("    v_mul_f32 v96, s30, v96")
    A("    v_mul_f32 v97, s30, v97")
    A("    v_exp_f32 v96, v96")
    A("    v_exp_f32 v97, v97")
    A("    s_nop 0")
    A("    v_add_f32 v96, 1.0, v96")
    A("    v_add_f32 v97, 1.0, v97")
    A("    v_rcp_f32 v96, v96")
    A("    v_rcp_f32 v97, v97")
    A("    s_nop 0")
    A("    v_cvt_pk_bf16_f32 v98, v96, v97")
    A("    v_lshlrev_b32 v96, 16, v98")
    A("    v_and_b32 v97, 0xffff0000, v98")
    A("    v_lshlrev_b32 v12, 3, v2")
    A("    s_mov_b32 exec_hi, 0xffff")
    A("    ds_write_b64 v12, v[96:97] offset:512")
    A("    s_mov_b64 exec, -1")
    A("    s_waitcnt lgkmcnt(0)")
    stamp(8)
    A("L_waitg:")
    A("    s_barrier")
    A("    v_and_b32 v14, 15, v2")
    A("    v_mul_u32_u24 v12, 24, v14")
    A("    ds_read_b64 v[96:97], v12 offset:512")
    A("    ds_read_b64 v[98:99], v12 offset:520")
    A("    ds_read_b64 v[100:101], v12 offset:528")
    A("    s_waitcnt lgkmcnt(0)")
    for i in range(NLOAD):
        b = 16 + 4 * i
        for d in range(3):
            A("    v_lshlrev_b32 v102, 16, v%d" % (b + d))
            A("    v_and_b32 v103, 0xffff0000, v%d" % (b + d))
            A("    v_mul_f32 v102, v102, v%d" % (96 + 2 * d))
            A("    v_mul_f32 v103, v103, v%d" % (97 + 2 * d))
            A("    v_cvt_pk_bf16_f32 v%d, v102, v103" % (b + d))
        so = ["0", "s24", "s25"][i // 6]
        A("    buffer_store_dwordx3 v[%d:%d], v3, s[20:23], %s offen offset:%d%s"
          % (b, b + 2, so, 768 * (i % 6), store_flags))
    if stamps:
        A("    s_cmp_lg_u32 s26, 0")
        A("    s_cbranch_scc1 L_end")
        A("    s_waitcnt vmcnt(0)")
        stamp(10)
    A("L_end:")
    A("    s_endpgm")
    A('.section .rodata,"a"')
    A(".p2align 6")
    A(".amdhsa_kernel %s" % KNAME)
    A("  .amdhsa_next_free_vgpr 128")
    A("  .amdhsa_next_free_sgpr 48")
    A("  .amdhsa_accum_offset 128")
    A("  .amdhsa_group_segment_fixed_size 0")
    A("  .amdhsa_kernarg_size 48")
    A("  .amdhsa_user_sgpr_count 2")
    A("  .amdhsa_user_sgpr_kernarg_segment_ptr 1")
    A("  .amdhsa_system_sgpr_workgroup_id_x 1")
    A(".end_amdhsa_kernel")
    return "\n".join(L) + "\n"

if __name__ == "__main__":
    out = sys.argv[1] if len(sys.argv) > 1 else "standalone__channel_attn_se__vision.s"
    open(out, "w").write(gen(stamps=(len(sys.argv) > 2)))
```

```python
import sys

KNAME = "standalone__channel_attn_se__vision_kernel"
NWG = 256
WG_BYTES = 196608
WAVE_BYTES = 12288
NLOAD = 16
NREP = 16
REP_STRIDE = 512
CNT_BASE = 8192
CNT_STRIDE = 128
LOAD_FLAGS = ""
STORE_FLAGS = ""

def gen(load_flags=LOAD_FLAGS, store_flags=STORE_FLAGS, poll_at=11, stamps=False, mode=0):
    L = []
    A = L.append
    def stamp(slot):
        if not stamps:
            return
        A("    s_memrealtime s[40:41]")
        A("    s_waitcnt lgkmcnt(0)")
        A("    s_not_b32 s41, s40")
        A("    s_mov_b64 s[42:43], exec")
        A("    s_mov_b64 exec, 1")
        A("    v_mov_b32 v110, s40")
        A("    v_mov_b32 v111, s41")
        A("    v_mov_b32 v112, 0")
        A("    global_atomic_umax v112, v110, s[12:13] offset:%d sc1" % (4 * slot))
        A("    global_atomic_umax v112, v111, s[12:13] offset:%d sc1" % (4 * slot + 4))
        A("    s_mov_b64 exec, s[42:43]")
    A("; @launch grid=(%d,1,1) block=(1024,1,1) lds=1024" % NWG)
    A('.amdgcn_target "amdgcn-amd-amdhsa--gfx950"')
    A(".text")
    A(".globl %s" % KNAME)
    A(".p2align 8")
    A(".type %s,@function" % KNAME)
    A("%s:" % KNAME)
    A("    s_cmp_ge_u32 s2, %d" % NWG)
    A("    s_cbranch_scc1 L_end")
    A("    s_load_dwordx4 s[4:7], s[0:1], 0")
    A("    s_load_dwordx4 s[8:11], s[0:1], 16")
    A("    s_load_dwordx4 s[12:15], s[0:1], 32")
    A("    v_lshrrev_b32 v1, 6, v0")
    A("    v_and_b32 v2, 63, v0")
    A("    v_mul_u32_u24 v3, 12, v2")
    A("    v_readfirstlane_b32 s26, v1")
    A("    v_and_b32 v14, 15, v2")
    A("    v_mov_b32 v15, 0x3f80")
    A("    v_mov_b32 v13, 0x3f800000")
    for r in range(4):
        A("    v_mov_b32 v%d, 0" % (4 + r))
    for r in range(4):
        A("    v_cmp_eq_u32 vcc, %d, v14" % (2 * r))
        A("    s_nop 1")
        A("    v_cndmask_b32 v%d, v%d, v15, vcc" % (4 + r, 4 + r))
        A("    v_cmp_eq_u32 vcc, %d, v14" % (2 * r + 1))
        A("    s_nop 1")
        A("    v_cndmask_b32 v%d, v%d, v13, vcc" % (4 + r, 4 + r))
    for r in range(4):
        A("    v_mov_b32 v%d, 0" % (8 + r))
    for i in range(NLOAD):
        A("    v_mov_b32 v%d, 0" % (16 + 4 * i + 3))
    if mode == 0:
        wave_mul, wg_mul, lstep = WAVE_BYTES, WG_BYTES, 768
    elif mode == 1:
        wave_mul, wg_mul, lstep = 768, WG_BYTES, 12288
    else:
        wave_mul, wg_mul, lstep = 768, 12288, 12288 * NWG
    A("    s_mul_i32 s27, s26, %d" % wave_mul)
    A("    v_add_u32 v3, s27, v3")
    A("    s_mul_i32 s28, s2, %d" % wg_mul)
    A("    s_waitcnt lgkmcnt(0)")
    A("    s_add_u32 s16, s4, s28")
    A("    s_addc_u32 s17, s5, 0")
    A("    s_sub_u32 s18, %d, s28" % (NWG * WG_BYTES))
    A("    s_mov_b32 s19, 0x00020000")
    A("    s_add_u32 s20, s10, s28")
    A("    s_addc_u32 s21, s11, 0")
    A("    s_mov_b32 s22, s18")
    A("    s_mov_b32 s23, 0x00020000")
    if stamps:
        A("    s_cmp_lg_u32 s26, 0")
        A("    s_cbranch_scc1 L_nostamp0")
        stamp(2)
        A("L_nostamp0:")
    A("    s_cmp_lg_u32 s2, 0")
    A("    s_cbranch_scc1 L_nozero")
    A("    v_lshlrev_b32 v14, 4, v0")
    A("    v_mov_b32 v96, 0")
    A("    v_mov_b32 v97, 0")
    A("    v_mov_b32 v98, 0")
    A("    v_mov_b32 v99, 0")
    A("    global_store_dwordx4 v14, v[96:99], s[14:15] sc1")
    A("L_nozero:")
    A("    s_cmp_lg_u32 s26, 0")
    A("    s_cbranch_scc1 L_noweights")
    A("    s_mov_b32 s32, s6")
    A("    s_mov_b32 s33, s7")
    A("    s_mov_b32 s34, 1152")
    A("    s_mov_b32 s35, 0x00020000")
    A("    s_mov_b32 s36, s8")
    A("    s_mov_b32 s37, s9")
    A("    s_mov_b32 s38, 1152")
    A("    s_mov_b32 s39, 0x00020000")
    A("    v_mul_u32_u24 v14, 24, v2")
    A("    v_lshlrev_b32 v15, 2, v2")
    A("    buffer_load_dwordx3 v[80:82], v14, s[32:35], 0 offen")
    A("    buffer_load_dwordx3 v[84:86], v14, s[32:35], 0 offen offset:12")
    for r in range(6):
        A("    buffer_load_dword v%d, v15, s[36:39], 0 offen offset:%d" % (88 + r, 192 * r))
    A("L_noweights:")
    A("    s_mov_b32 s24, 0")
    for i in range(NLOAD):
        A("    buffer_load_dwordx3 v[%d:%d], v3, s[16:19], s24 offen%s"
          % (16 + 4 * i, 16 + 4 * i + 2, load_flags))
        A("    s_add_u32 s24, s24, %d" % lstep)
    A("    v_lshlrev_b32 v12, 2, v0")
    A("    v_mov_b32 v14, 0")
    A("    v_cmp_gt_u32 vcc, 128, v0")
    A("    s_and_saveexec_b64 s[30:31], vcc")
    A("    ds_write_b32 v12, v14")
    A("    s_mov_b64 exec, s[30:31]")
    A("    s_cmp_lg_u32 s2, 0")
    A("    s_cbranch_scc1 L_nozwait")
    A("    s_waitcnt vmcnt(%d)" % NLOAD)
    A("L_nozwait:")
    A("    s_waitcnt lgkmcnt(0)")
    A("    s_barrier")
    A("    s_or_b32 s29, s2, s26")
    A("    s_cmp_lg_u32 s29, 0")
    A("    s_cbranch_scc1 L_noflag")
    A("    v_mov_b32 v14, 0")
    A("    v_mov_b32 v15, 1")
    A("    s_mov_b64 s[30:31], exec")
    A("    s_mov_b64 exec, 1")
    A("    global_atomic_add v14, v15, s[12:13] sc1")
    A("    s_mov_b64 exec, s[30:31]")
    A("L_noflag:")
    A("    v_and_b32 v14, 15, v2")
    A("    v_mul_u32_u24 v12, 24, v14")
    A("    v_lshrrev_b32 v14, 4, v2")
    A("    v_lshl_add_u32 v12, v14, 4, v12")
    A("    v_mov_b32 v14, 0")
    extra = 0
    for i in range(NLOAD):
        A("    s_waitcnt vmcnt(%d)" % (NLOAD - 1 - i + extra))
        A("    v_mfma_f32_16x16x32_bf16 v[8:11], v[4:7], v[%d:%d], v[8:11]" % (16 + 4 * i, 16 + 4 * i + 3))
        if i == poll_at:
            A("    global_load_dword v13, v14, s[12:13] sc1")
            extra = 1
    A("    s_nop 7")
    A("    s_mov_b32 exec_hi, 0")
    A("    ds_add_f32 v12, v8")
    A("    ds_add_f32 v12, v9 offset:4")
    A("    s_mov_b32 exec_lo, 0xffff")
    A("    ds_add_f32 v12, v10 offset:8")
    A("    ds_add_f32 v12, v11 offset:12")
    A("    s_mov_b64 exec, -1")
    A("    s_waitcnt lgkmcnt(0)")
    A("    s_barrier")
    A("    s_cmp_lg_u32 s26, 0")
    A("    s_cbranch_scc1 L_waitg")
    A("    s_waitcnt vmcnt(0)")
    stamp(4)
    A("    v_lshlrev_b32 v12, 2, v2")
    A("    ds_read_b32 v94, v12")
    A("    ds_read_b32 v95, v12 offset:256")
    A("    s_mov_b32 s31, 0")
    A("L_flagspin:")
    A("    v_readfirstlane_b32 s30, v13")
    A("    s_cmp_lg_u32 s30, 0")
    A("    s_cbranch_scc1 L_flagok")
    A("    s_add_u32 s31, s31, 1")
    A("    s_cmp_gt_u32 s31, 0x40000")
    A("    s_cbranch_scc1 L_flagok")
    A("    s_sleep 1")
    A("    global_load_dword v13, v14, s[12:13] sc1")
    A("    s_waitcnt vmcnt(0)")
    A("    s_branch L_flagspin")
    A("L_flagok:")
    A("    s_and_b32 s29, s2, %d" % (NREP - 1))
    A("    s_mul_i32 s30, s29, %d" % REP_STRIDE)
    A("    v_add_u32 v15, s30, v12")
    A("    s_waitcnt lgkmcnt(0)")
    A("    global_atomic_add_f32 v15, v94, s[14:15] sc1")
    A("    s_mov_b32 exec_hi, 0")
    A("    global_atomic_add_f32 v15, v95, s[14:15] offset:256 sc1")
    A("    s_mov_b64 exec, -1")
    A("    s_mul_i32 s30, s29, %d" % CNT_STRIDE)
    A("    s_add_u32 s30, s30, %d" % CNT_BASE)
    A("    v_mov_b32 v14, s30")
    A("    v_mov_b32 v15, 1")
    A("    v_lshlrev_b32 v12, 7, v2")
    A("    v_add_u32 v12, %d, v12" % CNT_BASE)
    A("    s_waitcnt vmcnt(0)")
    A("    s_mov_b64 exec, 1")
    A("    global_atomic_add v14, v15, s[14:15] sc1")
    A("    s_mov_b32 exec_lo, 0xffff")
    A("    s_mov_b32 s31, 0")
    A("L_poll:")
    A("    global_load_dword v13, v12, s[14:15] sc1")
    A("    s_waitcnt vmcnt(0)")
    A("    v_cmp_ne_u32 vcc, %d, v13" % (NWG // NREP))
    A("    s_cbranch_vccz L_polldone")
    A("    s_add_u32 s31, s31, 1")
    A("    s_cmp_gt_u32 s31, 0x40000")
    A("    s_cbranch_scc1 L_polldone")
    A("    s_sleep 1")
    A("    s_branch L_poll")
    A("L_polldone:")
    A("    s_mov_b64 exec, -1")
    stamp(6)
    A("    v_lshlrev_b32 v12, 3, v2")
    A("    v_add_u32 v14, 4096, v12")
    for r in range(NREP):
        base = "v12" if r < 8 else "v14"
        A("    global_load_dwordx2 v[%d:%d], %s, s[14:15] offset:%d sc1"
          % (96 + 2 * r, 97 + 2 * r, base, REP_STRIDE * (r % 8)))
    A("    s_waitcnt vmcnt(0)")
    step = 1
    while step < NREP:
        for r in range(0, NREP, 2 * step):
            A("    v_add_f32 v%d, v%d, v%d" % (96 + 2 * r, 96 + 2 * r, 96 + 2 * (r + step)))
            A("    v_add_f32 v%d, v%d, v%d" % (97 + 2 * r, 97 + 2 * r, 97 + 2 * (r + step)))
        step *= 2
    A("    v_mul_f32 v96, 0x36800000, v96")
    A("    v_mul_f32 v97, 0x36800000, v97")
    A("    v_cvt_pk_bf16_f32 v98, v96, v97")
    A("    v_lshlrev_b32 v96, 16, v98")
    A("    v_and_b32 v97, 0xffff0000, v98")
    for r in range(6):
        src0 = 80 + r // 2
        src1 = 84 + r // 2
        if r % 2 == 0:
            A("    v_lshlrev_b32 v106, 16, v%d" % src0)
            A("    v_lshlrev_b32 v107, 16, v%d" % src1)
        else:
            A("    v_and_b32 v106, 0xffff0000, v%d" % src0)
            A("    v_and_b32 v107, 0xffff0000, v%d" % src1)
        A("    v_mul_f32 v%d, v96, v106" % (100 + r))
        A("    v_fmac_f32 v%d, v97, v107" % (100 + r))
    for st in (1, 2, 4, 8):
        for r in range(6):
            A("    v_add_f32_dpp v%d, v%d, v%d row_ror:%d row_mask:0xf bank_mask:0xf"
              % (106 + r, 100 + r, 100 + r, st))
        A("    s_nop 1")
        for r in range(6):
            A("    v_mov_b32 v%d, v%d" % (100 + r, 106 + r))
        A("    s_nop 1")
    for op in ("v_permlane16_swap_b32", "v_permlane32_swap_b32"):
        for r in range(6):
            A("    v_mov_b32 v%d, v%d" % (106 + r, 100 + r))
        A("    s_nop 1")
        for r in range(6):
            A("    %s v%d, v%d" % (op, 100 + r, 106 + r))
        A("    s_nop 1")
        for r in range(6):
            A("    v_add_f32 v%d, v%d, v%d" % (100 + r, 100 + r, 106 + r))
    A("    s_mov_b32 s30, 0xbfb8aa3b")
    for r in range(0, 6, 2):
        A("    v_cvt_pk_bf16_f32 v106, v%d, v%d" % (100 + r, 101 + r))
        A("    v_lshlrev_b32 v%d, 16, v106" % (100 + r))
        A("    v_and_b32 v%d, 0xffff0000, v106" % (101 + r))
    for r in range(6):
        A("    v_mul_f32 v%d, s30, v%d" % (106 + r, 100 + r))
    for r in range(6):
        A("    v_exp_f32 v%d, v%d" % (106 + r, 106 + r))
    A("    s_nop 0")
    for r in range(6):
        A("    v_add_f32 v%d, 1.0, v%d" % (106 + r, 106 + r))
    for r in range(6):
        A("    v_rcp_f32 v%d, v%d" % (106 + r, 106 + r))
    A("    s_nop 0")
    for r in range(6):
        A("    v_mul_f32 v%d, v%d, v%d" % (100 + r, 100 + r, 106 + r))
    for r in range(0, 6, 2):
        A("    v_cvt_pk_bf16_f32 v106, v%d, v%d" % (100 + r, 101 + r))
        A("    v_lshlrev_b32 v%d, 16, v106" % (100 + r))
        A("    v_and_b32 v%d, 0xffff0000, v106" % (101 + r))
    A("    v_mov_b32 v96, 0")
    A("    v_mov_b32 v97, 0")
    for r in range(6):
        A("    v_lshlrev_b32 v106, 16, v%d" % (88 + r))
        A("    v_and_b32 v107, 0xffff0000, v%d" % (88 + r))
        A("    v_fmac_f32 v96, v%d, v106" % (100 + r))
        A("    v_fmac_f32 v97, v%d, v107" % (100 + r))
    A("    v_cvt_pk_bf16_f32 v98, v96, v97")
    A("    v_lshlrev_b32 v96, 16, v98")
    A("    v_and_b32 v97, 0xffff0000, v98")
    A("    v_mul_f32 v96, s30, v96")
    A("    v_mul_f32 v97, s30, v97")
    A("    v_exp_f32 v96, v96")
    A("    v_exp_f32 v97, v97")
    A("    s_nop 0")
    A("    v_add_f32 v96, 1.0, v96")
    A("    v_add_f32 v97, 1.0, v97")
    A("    v_rcp_f32 v96, v96")
    A("    v_rcp_f32 v97, v97")
    A("    s_nop 0")
    A("    v_cvt_pk_bf16_f32 v98, v96, v97")
    A("    v_lshlrev_b32 v96, 16, v98")
    A("    v_and_b32 v97, 0xffff0000, v98")
    A("    v_lshlrev_b32 v12, 3, v2")
    A("    s_mov_b32 exec_hi, 0xffff")
    A("    ds_write_b64 v12, v[96:97] offset:512")
    A("    s_mov_b64 exec, -1")
    A("    s_waitcnt lgkmcnt(0)")
    stamp(8)
    A("L_waitg:")
    A("    s_barrier")
    A("    v_and_b32 v14, 15, v2")
    A("    v_mul_u32_u24 v12, 24, v14")
    A("    ds_read_b64 v[96:97], v12 offset:512")
    A("    ds_read_b64 v[98:99], v12 offset:520")
    A("    ds_read_b64 v[100:101], v12 offset:528")
    A("    s_waitcnt lgkmcnt(0)")
    A("    s_mov_b32 s24, 0")
    for i in range(NLOAD):
        b = 16 + 4 * i
        for d in range(3):
            A("    v_lshlrev_b32 v102, 16, v%d" % (b + d))
            A("    v_and_b32 v103, 0xffff0000, v%d" % (b + d))
            A("    v_mul_f32 v102, v102, v%d" % (96 + 2 * d))
            A("    v_mul_f32 v103, v103, v%d" % (97 + 2 * d))
            A("    v_cvt_pk_bf16_f32 v%d, v102, v103" % (b + d))
        A("    buffer_store_dwordx3 v[%d:%d], v3, s[20:23], s24 offen%s"
          % (b, b + 2, store_flags))
        A("    s_add_u32 s24, s24, %d" % lstep)
    if stamps:
        A("    s_cmp_lg_u32 s26, 0")
        A("    s_cbranch_scc1 L_end")
        A("    s_waitcnt vmcnt(0)")
        stamp(10)
    A("L_end:")
    A("    s_endpgm")
    A('.section .rodata,"a"')
    A(".p2align 6")
    A(".amdhsa_kernel %s" % KNAME)
    A("  .amdhsa_next_free_vgpr 128")
    A("  .amdhsa_next_free_sgpr 48")
    A("  .amdhsa_accum_offset 128")
    A("  .amdhsa_group_segment_fixed_size 0")
    A("  .amdhsa_kernarg_size 48")
    A("  .amdhsa_user_sgpr_count 2")
    A("  .amdhsa_user_sgpr_kernarg_segment_ptr 1")
    A("  .amdhsa_system_sgpr_workgroup_id_x 1")
    A(".end_amdhsa_kernel")
    return "\n".join(L) + "\n"

if __name__ == "__main__":
    out = sys.argv[1] if len(sys.argv) > 1 else "standalone__channel_attn_se__vision.s"
    kw = {}
    for a in sys.argv[2:]:
        k, v = a.split("=")
        kw[k] = v if k.endswith("flags") else int(v)
    open(out, "w").write(gen(**kw))
```

```python
import sys

KNAME = "standalone__channel_attn_se__vision_kernel"
NWG = 256
WG_BYTES = 196608
WAVE_BYTES = 12288
NLOAD = 16
NREP = 16
REP_STRIDE = 512
CNT_BASE = 8192
CNT_STRIDE = 128
LOAD_FLAGS = ""
STORE_FLAGS = ""

def gen(load_flags=LOAD_FLAGS, store_flags=STORE_FLAGS, poll_at=11, stamps=False, mode=0):
    L = []
    A = L.append
    def stamp(slot):
        if not stamps:
            return
        if slot == 2:
            A("    s_memrealtime s[44:45]")
            A("    s_waitcnt lgkmcnt(0)")
            return
        lab = "L_st%d" % slot
        A("    s_and_b32 s40, s2, 63")
        A("    s_cmp_lg_u32 s40, 3")
        A("    s_cbranch_scc1 %s" % lab)
        A("    s_memrealtime s[40:41]")
        A("    s_waitcnt lgkmcnt(0)")
        A("    s_sub_u32 s40, s40, s44")
        A("    s_lshr_b32 s41, s2, 6")
        A("    s_lshl_b32 s41, s41, 2")
        A("    s_mov_b64 s[42:43], exec")
        A("    s_mov_b64 exec, 1")
        A("    v_mov_b32 v110, s40")
        A("    v_mov_b32 v112, s41")
        base = {4: 0, 6: 4, 8: 8, 10: 12}[slot]
        A("    global_store_dword v112, v110, s[12:13] offset:%d" % (4 * base))
        A("    s_mov_b64 exec, s[42:43]")
        A("%s:" % lab)
    A("; @launch grid=(%d,1,1) block=(1024,1,1) lds=1024" % NWG)
    A('.amdgcn_target "amdgcn-amd-amdhsa--gfx950"')
    A(".text")
    A(".globl %s" % KNAME)
    A(".p2align 8")
    A(".type %s,@function" % KNAME)
    A("%s:" % KNAME)
    A("    s_cmp_ge_u32 s2, %d" % NWG)
    A("    s_cbranch_scc1 L_end")
    A("    s_load_dwordx4 s[4:7], s[0:1], 0")
    A("    s_load_dwordx4 s[8:11], s[0:1], 16")
    A("    s_load_dwordx4 s[12:15], s[0:1], 32")
    A("    v_lshrrev_b32 v1, 6, v0")
    A("    v_and_b32 v2, 63, v0")
    A("    v_mul_u32_u24 v3, 12, v2")
    A("    v_readfirstlane_b32 s26, v1")
    A("    v_and_b32 v14, 15, v2")
    A("    v_mov_b32 v15, 0x3f80")
    A("    v_mov_b32 v13, 0x3f800000")
    for r in range(4):
        A("    v_mov_b32 v%d, 0" % (4 + r))
    for r in range(4):
        A("    v_cmp_eq_u32 vcc, %d, v14" % (2 * r))
        A("    s_nop 1")
        A("    v_cndmask_b32 v%d, v%d, v15, vcc" % (4 + r, 4 + r))
        A("    v_cmp_eq_u32 vcc, %d, v14" % (2 * r + 1))
        A("    s_nop 1")
        A("    v_cndmask_b32 v%d, v%d, v13, vcc" % (4 + r, 4 + r))
    for r in range(4):
        A("    v_mov_b32 v%d, 0" % (8 + r))
    for i in range(NLOAD):
        A("    v_mov_b32 v%d, 0" % (16 + 4 * i + 3))
    if mode == 0:
        wave_mul, wg_mul, lstep = WAVE_BYTES, WG_BYTES, 768
    elif mode == 1:
        wave_mul, wg_mul, lstep = 768, WG_BYTES, 12288
    else:
        wave_mul, wg_mul, lstep = 768, 12288, 12288 * NWG
    A("    s_mul_i32 s27, s26, %d" % wave_mul)
    A("    v_add_u32 v3, s27, v3")
    A("    s_mul_i32 s28, s2, %d" % wg_mul)
    A("    s_waitcnt lgkmcnt(0)")
    A("    s_add_u32 s16, s4, s28")
    A("    s_addc_u32 s17, s5, 0")
    A("    s_sub_u32 s18, %d, s28" % (NWG * WG_BYTES))
    A("    s_mov_b32 s19, 0x00020000")
    A("    s_add_u32 s20, s10, s28")
    A("    s_addc_u32 s21, s11, 0")
    A("    s_mov_b32 s22, s18")
    A("    s_mov_b32 s23, 0x00020000")
    if stamps:
        A("    s_cmp_lg_u32 s26, 0")
        A("    s_cbranch_scc1 L_nostamp0")
        stamp(2)
        A("L_nostamp0:")
    A("    s_cmp_lg_u32 s2, 0")
    A("    s_cbranch_scc1 L_nozero")
    A("    v_lshlrev_b32 v14, 4, v0")
    A("    v_mov_b32 v96, 0")
    A("    v_mov_b32 v97, 0")
    A("    v_mov_b32 v98, 0")
    A("    v_mov_b32 v99, 0")
    A("    global_store_dwordx4 v14, v[96:99], s[14:15] sc1")
    A("L_nozero:")
    A("    s_cmp_lg_u32 s26, 0")
    A("    s_cbranch_scc1 L_noweights")
    A("    s_mov_b32 s32, s6")
    A("    s_mov_b32 s33, s7")
    A("    s_mov_b32 s34, 1152")
    A("    s_mov_b32 s35, 0x00020000")
    A("    s_mov_b32 s36, s8")
    A("    s_mov_b32 s37, s9")
    A("    s_mov_b32 s38, 1152")
    A("    s_mov_b32 s39, 0x00020000")
    A("    v_mul_u32_u24 v14, 24, v2")
    A("    v_lshlrev_b32 v15, 2, v2")
    A("    buffer_load_dwordx3 v[80:82], v14, s[32:35], 0 offen")
    A("    buffer_load_dwordx3 v[84:86], v14, s[32:35], 0 offen offset:12")
    for r in range(6):
        A("    buffer_load_dword v%d, v15, s[36:39], 0 offen offset:%d" % (88 + r, 192 * r))
    A("L_noweights:")
    A("    s_mov_b32 s24, 0")
    for i in range(NLOAD):
        A("    buffer_load_dwordx3 v[%d:%d], v3, s[16:19], s24 offen%s"
          % (16 + 4 * i, 16 + 4 * i + 2, load_flags))
        A("    s_add_u32 s24, s24, %d" % lstep)
    A("    v_lshlrev_b32 v12, 2, v0")
    A("    v_mov_b32 v14, 0")
    A("    v_cmp_gt_u32 vcc, 128, v0")
    A("    s_and_saveexec_b64 s[30:31], vcc")
    A("    ds_write_b32 v12, v14")
    A("    s_mov_b64 exec, s[30:31]")
    A("    s_cmp_lg_u32 s2, 0")
    A("    s_cbranch_scc1 L_nozwait")
    A("    s_waitcnt vmcnt(%d)" % NLOAD)
    A("L_nozwait:")
    A("    s_waitcnt lgkmcnt(0)")
    A("    s_barrier")
    A("    s_or_b32 s29, s2, s26")
    A("    s_cmp_lg_u32 s29, 0")
    A("    s_cbranch_scc1 L_noflag")
    A("    v_mov_b32 v14, 0")
    A("    v_mov_b32 v15, 1")
    A("    s_mov_b64 s[30:31], exec")
    A("    s_mov_b64 exec, 1")
    A("    global_atomic_add v14, v15, s[12:13] sc1")
    A("    s_mov_b64 exec, s[30:31]")
    A("L_noflag:")
    A("    v_and_b32 v14, 15, v2")
    A("    v_mul_u32_u24 v12, 24, v14")
    A("    v_lshrrev_b32 v14, 4, v2")
    A("    v_lshl_add_u32 v12, v14, 4, v12")
    A("    v_mov_b32 v14, 0")
    extra = 0
    for i in range(NLOAD):
        A("    s_waitcnt vmcnt(%d)" % (NLOAD - 1 - i + extra))
        A("    v_mfma_f32_16x16x32_bf16 v[8:11], v[4:7], v[%d:%d], v[8:11]" % (16 + 4 * i, 16 + 4 * i + 3))
        if i == poll_at:
            A("    global_load_dword v13, v14, s[12:13] sc1")
            extra = 1
    A("    s_nop 7")
    A("    s_mov_b32 exec_hi, 0")
    A("    ds_add_f32 v12, v8")
    A("    ds_add_f32 v12, v9 offset:4")
    A("    s_mov_b32 exec_lo, 0xffff")
    A("    ds_add_f32 v12, v10 offset:8")
    A("    ds_add_f32 v12, v11 offset:12")
    A("    s_mov_b64 exec, -1")
    A("    s_waitcnt lgkmcnt(0)")
    A("    s_barrier")
    A("    s_cmp_lg_u32 s26, 0")
    A("    s_cbranch_scc1 L_waitg")
    A("    s_waitcnt vmcnt(0)")
    stamp(4)
    A("    v_lshlrev_b32 v12, 2, v2")
    A("    ds_read_b32 v94, v12")
    A("    ds_read_b32 v95, v12 offset:256")
    A("    s_mov_b32 s31, 0")
    A("L_flagspin:")
    A("    v_readfirstlane_b32 s30, v13")
    A("    s_cmp_lg_u32 s30, 0")
    A("    s_cbranch_scc1 L_flagok")
    A("    s_add_u32 s31, s31, 1")
    A("    s_cmp_gt_u32 s31, 0x40000")
    A("    s_cbranch_scc1 L_flagok")
    A("    s_sleep 1")
    A("    global_load_dword v13, v14, s[12:13] sc1")
    A("    s_waitcnt vmcnt(0)")
    A("    s_branch L_flagspin")
    A("L_flagok:")
    A("    s_and_b32 s29, s2, %d" % (NREP - 1))
    A("    s_mul_i32 s30, s29, %d" % REP_STRIDE)
    A("    v_add_u32 v15, s30, v12")
    A("    s_waitcnt lgkmcnt(0)")
    A("    global_atomic_add_f32 v15, v94, s[14:15] sc1")
    A("    s_mov_b32 exec_hi, 0")
    A("    global_atomic_add_f32 v15, v95, s[14:15] offset:256 sc1")
    A("    s_mov_b64 exec, -1")
    A("    s_mul_i32 s30, s29, %d" % CNT_STRIDE)
    A("    s_add_u32 s30, s30, %d" % CNT_BASE)
    A("    v_mov_b32 v14, s30")
    A("    v_mov_b32 v15, 1")
    A("    v_lshlrev_b32 v12, 7, v2")
    A("    v_add_u32 v12, %d, v12" % CNT_BASE)
    A("    s_waitcnt vmcnt(0)")
    A("    s_mov_b64 exec, 1")
    A("    global_atomic_add v14, v15, s[14:15] sc1")
    A("    s_mov_b32 exec_lo, 0xffff")
    A("    s_mov_b32 s31, 0")
    A("L_poll:")
    A("    global_load_dword v13, v12, s[14:15] sc1")
    A("    s_waitcnt vmcnt(0)")
    A("    v_cmp_ne_u32 vcc, %d, v13" % (NWG // NREP))
    A("    s_cbranch_vccz L_polldone")
    A("    s_add_u32 s31, s31, 1")
    A("    s_cmp_gt_u32 s31, 0x40000")
    A("    s_cbranch_scc1 L_polldone")
    A("    s_sleep 1")
    A("    s_branch L_poll")
    A("L_polldone:")
    A("    s_mov_b64 exec, -1")
    stamp(6)
    A("    v_lshlrev_b32 v12, 3, v2")
    A("    v_add_u32 v14, 4096, v12")
    for r in range(NREP):
        base = "v12" if r < 8 else "v14"
        A("    global_load_dwordx2 v[%d:%d], %s, s[14:15] offset:%d sc1"
          % (96 + 2 * r, 97 + 2 * r, base, REP_STRIDE * (r % 8)))
    A("    s_waitcnt vmcnt(0)")
    step = 1
    while step < NREP:
        for r in range(0, NREP, 2 * step):
            A("    v_add_f32 v%d, v%d, v%d" % (96 + 2 * r, 96 + 2 * r, 96 + 2 * (r + step)))
            A("    v_add_f32 v%d, v%d, v%d" % (97 + 2 * r, 97 + 2 * r, 97 + 2 * (r + step)))
        step *= 2
    A("    v_mul_f32 v96, 0x36800000, v96")
    A("    v_mul_f32 v97, 0x36800000, v97")
    A("    v_cvt_pk_bf16_f32 v98, v96, v97")
    A("    v_lshlrev_b32 v96, 16, v98")
    A("    v_and_b32 v97, 0xffff0000, v98")
    for r in range(6):
        src0 = 80 + r // 2
        src1 = 84 + r // 2
        if r % 2 == 0:
            A("    v_lshlrev_b32 v106, 16, v%d" % src0)
            A("    v_lshlrev_b32 v107, 16, v%d" % src1)
        else:
            A("    v_and_b32 v106, 0xffff0000, v%d" % src0)
            A("    v_and_b32 v107, 0xffff0000, v%d" % src1)
        A("    v_mul_f32 v%d, v96, v106" % (100 + r))
        A("    v_fmac_f32 v%d, v97, v107" % (100 + r))
    for st in (1, 2, 4, 8):
        for r in range(6):
            A("    v_add_f32_dpp v%d, v%d, v%d row_ror:%d row_mask:0xf bank_mask:0xf"
              % (106 + r, 100 + r, 100 + r, st))
        A("    s_nop 1")
        for r in range(6):
            A("    v_mov_b32 v%d, v%d" % (100 + r, 106 + r))
        A("    s_nop 1")
    for op in ("v_permlane16_swap_b32", "v_permlane32_swap_b32"):
        for r in range(6):
            A("    v_mov_b32 v%d, v%d" % (106 + r, 100 + r))
        A("    s_nop 1")
        for r in range(6):
            A("    %s v%d, v%d" % (op, 100 + r, 106 + r))
        A("    s_nop 1")
        for r in range(6):
            A("    v_add_f32 v%d, v%d, v%d" % (100 + r, 100 + r, 106 + r))
    A("    s_mov_b32 s30, 0xbfb8aa3b")
    for r in range(0, 6, 2):
        A("    v_cvt_pk_bf16_f32 v106, v%d, v%d" % (100 + r, 101 + r))
        A("    v_lshlrev_b32 v%d, 16, v106" % (100 + r))
        A("    v_and_b32 v%d, 0xffff0000, v106" % (101 + r))
    for r in range(6):
        A("    v_mul_f32 v%d, s30, v%d" % (106 + r, 100 + r))
    for r in range(6):
        A("    v_exp_f32 v%d, v%d" % (106 + r, 106 + r))
    A("    s_nop 0")
    for r in range(6):
        A("    v_add_f32 v%d, 1.0, v%d" % (106 + r, 106 + r))
    for r in range(6):
        A("    v_rcp_f32 v%d, v%d" % (106 + r, 106 + r))
    A("    s_nop 0")
    for r in range(6):
        A("    v_mul_f32 v%d, v%d, v%d" % (100 + r, 100 + r, 106 + r))
    for r in range(0, 6, 2):
        A("    v_cvt_pk_bf16_f32 v106, v%d, v%d" % (100 + r, 101 + r))
        A("    v_lshlrev_b32 v%d, 16, v106" % (100 + r))
        A("    v_and_b32 v%d, 0xffff0000, v106" % (101 + r))
    A("    v_mov_b32 v96, 0")
    A("    v_mov_b32 v97, 0")
    for r in range(6):
        A("    v_lshlrev_b32 v106, 16, v%d" % (88 + r))
        A("    v_and_b32 v107, 0xffff0000, v%d" % (88 + r))
        A("    v_fmac_f32 v96, v%d, v106" % (100 + r))
        A("    v_fmac_f32 v97, v%d, v107" % (100 + r))
    A("    v_cvt_pk_bf16_f32 v98, v96, v97")
    A("    v_lshlrev_b32 v96, 16, v98")
    A("    v_and_b32 v97, 0xffff0000, v98")
    A("    v_mul_f32 v96, s30, v96")
    A("    v_mul_f32 v97, s30, v97")
    A("    v_exp_f32 v96, v96")
    A("    v_exp_f32 v97, v97")
    A("    s_nop 0")
    A("    v_add_f32 v96, 1.0, v96")
    A("    v_add_f32 v97, 1.0, v97")
    A("    v_rcp_f32 v96, v96")
    A("    v_rcp_f32 v97, v97")
    A("    s_nop 0")
    A("    v_cvt_pk_bf16_f32 v98, v96, v97")
    A("    v_lshlrev_b32 v96, 16, v98")
    A("    v_and_b32 v97, 0xffff0000, v98")
    A("    v_lshlrev_b32 v12, 3, v2")
    A("    s_mov_b32 exec_hi, 0xffff")
    A("    ds_write_b64 v12, v[96:97] offset:512")
    A("    s_mov_b64 exec, -1")
    A("    s_waitcnt lgkmcnt(0)")
    stamp(8)
    A("L_waitg:")
    A("    s_barrier")
    A("    v_and_b32 v14, 15, v2")
    A("    v_mul_u32_u24 v12, 24, v14")
    A("    ds_read_b64 v[96:97], v12 offset:512")
    A("    ds_read_b64 v[98:99], v12 offset:520")
    A("    ds_read_b64 v[100:101], v12 offset:528")
    A("    s_waitcnt lgkmcnt(0)")
    A("    s_mov_b32 s24, 0")
    for i in range(NLOAD):
        b = 16 + 4 * i
        for d in range(3):
            A("    v_lshlrev_b32 v102, 16, v%d" % (b + d))
            A("    v_and_b32 v103, 0xffff0000, v%d" % (b + d))
            A("    v_mul_f32 v102, v102, v%d" % (96 + 2 * d))
            A("    v_mul_f32 v103, v103, v%d" % (97 + 2 * d))
            A("    v_cvt_pk_bf16_f32 v%d, v102, v103" % (b + d))
        A("    buffer_store_dwordx3 v[%d:%d], v3, s[20:23], s24 offen%s"
          % (b, b + 2, store_flags))
        A("    s_add_u32 s24, s24, %d" % lstep)
    if stamps:
        A("    s_cmp_lg_u32 s26, 0")
        A("    s_cbranch_scc1 L_end")
        A("    s_waitcnt vmcnt(0)")
        stamp(10)
    A("L_end:")
    A("    s_endpgm")
    A('.section .rodata,"a"')
    A(".p2align 6")
    A(".amdhsa_kernel %s" % KNAME)
    A("  .amdhsa_next_free_vgpr 128")
    A("  .amdhsa_next_free_sgpr 50")
    A("  .amdhsa_accum_offset 128")
    A("  .amdhsa_group_segment_fixed_size 0")
    A("  .amdhsa_kernarg_size 48")
    A("  .amdhsa_user_sgpr_count 2")
    A("  .amdhsa_user_sgpr_kernarg_segment_ptr 1")
    A("  .amdhsa_system_sgpr_workgroup_id_x 1")
    A(".end_amdhsa_kernel")
    return "\n".join(L) + "\n"

if __name__ == "__main__":
    out = sys.argv[1] if len(sys.argv) > 1 else "standalone__channel_attn_se__vision.s"
    kw = {}
    for a in sys.argv[2:]:
        k, v = a.split("=")
        kw[k] = v if k.endswith("flags") else int(v)
    open(out, "w").write(gen(**kw))
```

```python
import sys

KNAME = "standalone__channel_attn_se__vision_kernel"
NWG = 256
WG_BYTES = 196608
WAVE_BYTES = 12288
NLOAD = 16
NREP = 16
REP_STRIDE = 512
CNT_BASE = 8192
CNT_STRIDE = 128
LOAD_FLAGS = ""
STORE_FLAGS = ""

def gen(load_flags=LOAD_FLAGS, store_flags=STORE_FLAGS, poll_at=11, stamps=False, mode=0, wstamps=0, nostore=0, psleep=1):
    L = []
    A = L.append
    def stamp(slot):
        if not stamps:
            return
        if slot == 2:
            A("    s_memrealtime s[44:45]")
            A("    s_waitcnt lgkmcnt(0)")
            return
        lab = "L_st%d" % slot
        A("    s_and_b32 s40, s2, 63")
        A("    s_cmp_lg_u32 s40, 3")
        A("    s_cbranch_scc1 %s" % lab)
        A("    s_memrealtime s[40:41]")
        A("    s_waitcnt lgkmcnt(0)")
        A("    s_sub_u32 s40, s40, s44")
        A("    s_lshr_b32 s41, s2, 6")
        A("    s_lshl_b32 s41, s41, 2")
        A("    s_mov_b64 s[42:43], exec")
        A("    s_mov_b64 exec, 1")
        A("    v_mov_b32 v110, s40")
        A("    v_mov_b32 v112, s41")
        base = {4: 0, 6: 4, 8: 8, 10: 12}[slot]
        A("    global_store_dword v112, v110, s[12:13] offset:%d" % (4 * base))
        A("    s_mov_b64 exec, s[42:43]")
        A("%s:" % lab)
    A("; @launch grid=(%d,1,1) block=(1024,1,1) lds=1024" % NWG)
    A('.amdgcn_target "amdgcn-amd-amdhsa--gfx950"')
    A(".text")
    A(".globl %s" % KNAME)
    A(".p2align 8")
    A(".type %s,@function" % KNAME)
    A("%s:" % KNAME)
    A("    s_cmp_ge_u32 s2, %d" % NWG)
    A("    s_cbranch_scc1 L_end")
    A("    s_load_dwordx4 s[4:7], s[0:1], 0")
    A("    s_load_dwordx4 s[8:11], s[0:1], 16")
    A("    s_load_dwordx4 s[12:15], s[0:1], 32")
    if wstamps:
        A("    s_memrealtime s[46:47]")
    A("    v_lshrrev_b32 v1, 6, v0")
    A("    v_and_b32 v2, 63, v0")
    A("    v_mul_u32_u24 v3, 12, v2")
    A("    v_readfirstlane_b32 s26, v1")
    A("    v_and_b32 v14, 15, v2")
    A("    v_mov_b32 v15, 0x3f80")
    A("    v_mov_b32 v13, 0x3f800000")
    for r in range(4):
        A("    v_mov_b32 v%d, 0" % (4 + r))
    for r in range(4):
        A("    v_cmp_eq_u32 vcc, %d, v14" % (2 * r))
        A("    s_nop 1")
        A("    v_cndmask_b32 v%d, v%d, v15, vcc" % (4 + r, 4 + r))
        A("    v_cmp_eq_u32 vcc, %d, v14" % (2 * r + 1))
        A("    s_nop 1")
        A("    v_cndmask_b32 v%d, v%d, v13, vcc" % (4 + r, 4 + r))
    for r in range(4):
        A("    v_mov_b32 v%d, 0" % (8 + r))
    for i in range(NLOAD):
        A("    v_mov_b32 v%d, 0" % (16 + 4 * i + 3))
    if mode == 0:
        wave_mul, wg_mul, lstep = WAVE_BYTES, WG_BYTES, 768
    elif mode == 1:
        wave_mul, wg_mul, lstep = 768, WG_BYTES, 12288
    else:
        wave_mul, wg_mul, lstep = 768, 12288, 12288 * NWG
    A("    s_mul_i32 s27, s26, %d" % wave_mul)
    A("    v_add_u32 v3, s27, v3")
    A("    s_mul_i32 s28, s2, %d" % wg_mul)
    A("    s_waitcnt lgkmcnt(0)")
    A("    s_add_u32 s16, s4, s28")
    A("    s_addc_u32 s17, s5, 0")
    A("    s_sub_u32 s18, %d, s28" % (NWG * WG_BYTES))
    A("    s_mov_b32 s19, 0x00020000")
    A("    s_add_u32 s20, s10, s28")
    A("    s_addc_u32 s21, s11, 0")
    A("    s_mov_b32 s22, s18")
    A("    s_mov_b32 s23, 0x00020000")
    if stamps:
        A("    s_cmp_lg_u32 s26, 0")
        A("    s_cbranch_scc1 L_nostamp0")
        stamp(2)
        A("L_nostamp0:")
    A("    s_cmp_lg_u32 s2, 0")
    A("    s_cbranch_scc1 L_nozero")
    A("    v_lshlrev_b32 v14, 4, v0")
    A("    v_mov_b32 v96, 0")
    A("    v_mov_b32 v97, 0")
    A("    v_mov_b32 v98, 0")
    A("    v_mov_b32 v99, 0")
    A("    global_store_dwordx4 v14, v[96:99], s[14:15] sc1")
    A("L_nozero:")
    A("    s_cmp_lg_u32 s26, 0")
    A("    s_cbranch_scc1 L_noweights")
    A("    s_mov_b32 s32, s6")
    A("    s_mov_b32 s33, s7")
    A("    s_mov_b32 s34, 1152")
    A("    s_mov_b32 s35, 0x00020000")
    A("    s_mov_b32 s36, s8")
    A("    s_mov_b32 s37, s9")
    A("    s_mov_b32 s38, 1152")
    A("    s_mov_b32 s39, 0x00020000")
    A("    v_mul_u32_u24 v14, 24, v2")
    A("    v_lshlrev_b32 v15, 2, v2")
    A("    buffer_load_dwordx3 v[80:82], v14, s[32:35], 0 offen")
    A("    buffer_load_dwordx3 v[84:86], v14, s[32:35], 0 offen offset:12")
    for r in range(6):
        A("    buffer_load_dword v%d, v15, s[36:39], 0 offen offset:%d" % (88 + r, 192 * r))
    A("L_noweights:")
    A("    s_mov_b32 s24, 0")
    for i in range(NLOAD):
        A("    buffer_load_dwordx3 v[%d:%d], v3, s[16:19], s24 offen%s"
          % (16 + 4 * i, 16 + 4 * i + 2, load_flags))
        A("    s_add_u32 s24, s24, %d" % lstep)
    A("    v_lshlrev_b32 v12, 2, v0")
    A("    v_mov_b32 v14, 0")
    A("    v_cmp_gt_u32 vcc, 128, v0")
    A("    s_and_saveexec_b64 s[30:31], vcc")
    A("    ds_write_b32 v12, v14")
    A("    s_mov_b64 exec, s[30:31]")
    A("    s_cmp_lg_u32 s2, 0")
    A("    s_cbranch_scc1 L_nozwait")
    A("    s_waitcnt vmcnt(%d)" % NLOAD)
    A("L_nozwait:")
    A("    s_waitcnt lgkmcnt(0)")
    A("    s_barrier")
    A("    s_or_b32 s29, s2, s26")
    A("    s_cmp_lg_u32 s29, 0")
    A("    s_cbranch_scc1 L_noflag")
    A("    v_mov_b32 v14, 0")
    A("    v_mov_b32 v15, 1")
    A("    s_mov_b64 s[30:31], exec")
    A("    s_mov_b64 exec, 1")
    A("    global_atomic_add v14, v15, s[12:13] sc1")
    A("    s_mov_b64 exec, s[30:31]")
    A("L_noflag:")
    A("    v_and_b32 v14, 15, v2")
    A("    v_mul_u32_u24 v12, 24, v14")
    A("    v_lshrrev_b32 v14, 4, v2")
    A("    v_lshl_add_u32 v12, v14, 4, v12")
    A("    v_mov_b32 v14, 0")
    extra = 0
    for i in range(NLOAD):
        A("    s_waitcnt vmcnt(%d)" % (NLOAD - 1 - i + extra))
        A("    v_mfma_f32_16x16x32_bf16 v[8:11], v[4:7], v[%d:%d], v[8:11]" % (16 + 4 * i, 16 + 4 * i + 3))
        if i == poll_at:
            A("    global_load_dword v13, v14, s[12:13] sc1")
            extra = 1
    if wstamps:
        A("    s_memrealtime s[48:49]")
    A("    s_nop 7")
    A("    s_mov_b32 exec_hi, 0")
    A("    ds_add_f32 v12, v8")
    A("    ds_add_f32 v12, v9 offset:4")
    A("    s_mov_b32 exec_lo, 0xffff")
    A("    ds_add_f32 v12, v10 offset:8")
    A("    ds_add_f32 v12, v11 offset:12")
    A("    s_mov_b64 exec, -1")
    A("    s_waitcnt lgkmcnt(0)")
    A("    s_barrier")
    A("    s_cmp_lg_u32 s26, 0")
    A("    s_cbranch_scc1 L_waitg")
    A("    s_waitcnt vmcnt(0)")
    stamp(4)
    A("    v_lshlrev_b32 v12, 2, v2")
    A("    ds_read_b32 v94, v12")
    A("    ds_read_b32 v95, v12 offset:256")
    A("    s_mov_b32 s31, 0")
    A("L_flagspin:")
    A("    v_readfirstlane_b32 s30, v13")
    A("    s_cmp_lg_u32 s30, 0")
    A("    s_cbranch_scc1 L_flagok")
    A("    s_add_u32 s31, s31, 1")
    A("    s_cmp_gt_u32 s31, 0x40000")
    A("    s_cbranch_scc1 L_flagok")
    A("    s_sleep 1")
    A("    global_load_dword v13, v14, s[12:13] sc1")
    A("    s_waitcnt vmcnt(0)")
    A("    s_branch L_flagspin")
    A("L_flagok:")
    A("    s_and_b32 s29, s2, %d" % (NREP - 1))
    A("    s_mul_i32 s30, s29, %d" % REP_STRIDE)
    A("    v_add_u32 v15, s30, v12")
    A("    s_waitcnt lgkmcnt(0)")
    A("    global_atomic_add_f32 v15, v94, s[14:15] sc1")
    A("    s_mov_b32 exec_hi, 0")
    A("    global_atomic_add_f32 v15, v95, s[14:15] offset:256 sc1")
    A("    s_mov_b64 exec, -1")
    A("    s_mul_i32 s30, s29, %d" % CNT_STRIDE)
    A("    s_add_u32 s30, s30, %d" % CNT_BASE)
    A("    v_mov_b32 v14, s30")
    A("    v_mov_b32 v15, 1")
    A("    v_lshlrev_b32 v12, 7, v2")
    A("    v_add_u32 v12, %d, v12" % CNT_BASE)
    A("    s_waitcnt vmcnt(0)")
    if stamps == 2:
        stamp(6)
    A("    s_mov_b64 exec, 1")
    A("    global_atomic_add v14, v15, s[14:15] sc1")
    A("    s_mov_b32 exec_lo, 0xffff")
    A("    s_mov_b32 s31, 0")
    A("L_poll:")
    A("    global_load_dword v13, v12, s[14:15] sc1")
    A("    s_waitcnt vmcnt(0)")
    A("    v_cmp_ne_u32 vcc, %d, v13" % (NWG // NREP))
    A("    s_cbranch_vccz L_polldone")
    A("    s_add_u32 s31, s31, 1")
    A("    s_cmp_gt_u32 s31, 0x40000")
    A("    s_cbranch_scc1 L_polldone")
    A("    s_sleep %d" % psleep)
    A("    s_branch L_poll")
    A("L_polldone:")
    A("    s_mov_b64 exec, -1")
    stamp(8 if stamps == 2 else 6)
    A("    v_lshlrev_b32 v12, 3, v2")
    A("    v_add_u32 v14, 4096, v12")
    for r in range(NREP):
        base = "v12" if r < 8 else "v14"
        A("    global_load_dwordx2 v[%d:%d], %s, s[14:15] offset:%d sc1"
          % (96 + 2 * r, 97 + 2 * r, base, REP_STRIDE * (r % 8)))
    A("    s_waitcnt vmcnt(0)")
    step = 1
    while step < NREP:
        for r in range(0, NREP, 2 * step):
            A("    v_add_f32 v%d, v%d, v%d" % (96 + 2 * r, 96 + 2 * r, 96 + 2 * (r + step)))
            A("    v_add_f32 v%d, v%d, v%d" % (97 + 2 * r, 97 + 2 * r, 97 + 2 * (r + step)))
        step *= 2
    A("    v_mul_f32 v96, 0x36800000, v96")
    A("    v_mul_f32 v97, 0x36800000, v97")
    A("    v_cvt_pk_bf16_f32 v98, v96, v97")
    A("    v_lshlrev_b32 v96, 16, v98")
    A("    v_and_b32 v97, 0xffff0000, v98")
    for r in range(6):
        src0 = 80 + r // 2
        src1 = 84 + r // 2
        if r % 2 == 0:
            A("    v_lshlrev_b32 v106, 16, v%d" % src0)
            A("    v_lshlrev_b32 v107, 16, v%d" % src1)
        else:
            A("    v_and_b32 v106, 0xffff0000, v%d" % src0)
            A("    v_and_b32 v107, 0xffff0000, v%d" % src1)
        A("    v_mul_f32 v%d, v96, v106" % (100 + r))
        A("    v_fmac_f32 v%d, v97, v107" % (100 + r))
    for st in (1, 2, 4, 8):
        for r in range(6):
            A("    v_add_f32_dpp v%d, v%d, v%d row_ror:%d row_mask:0xf bank_mask:0xf"
              % (106 + r, 100 + r, 100 + r, st))
        A("    s_nop 1")
        for r in range(6):
            A("    v_mov_b32 v%d, v%d" % (100 + r, 106 + r))
        A("    s_nop 1")
    for op in ("v_permlane16_swap_b32", "v_permlane32_swap_b32"):
        for r in range(6):
            A("    v_mov_b32 v%d, v%d" % (106 + r, 100 + r))
        A("    s_nop 1")
        for r in range(6):
            A("    %s v%d, v%d" % (op, 100 + r, 106 + r))
        A("    s_nop 1")
        for r in range(6):
            A("    v_add_f32 v%d, v%d, v%d" % (100 + r, 100 + r, 106 + r))
    A("    s_mov_b32 s30, 0xbfb8aa3b")
    for r in range(0, 6, 2):
        A("    v_cvt_pk_bf16_f32 v106, v%d, v%d" % (100 + r, 101 + r))
        A("    v_lshlrev_b32 v%d, 16, v106" % (100 + r))
        A("    v_and_b32 v%d, 0xffff0000, v106" % (101 + r))
    for r in range(6):
        A("    v_mul_f32 v%d, s30, v%d" % (106 + r, 100 + r))
    for r in range(6):
        A("    v_exp_f32 v%d, v%d" % (106 + r, 106 + r))
    A("    s_nop 0")
    for r in range(6):
        A("    v_add_f32 v%d, 1.0, v%d" % (106 + r, 106 + r))
    for r in range(6):
        A("    v_rcp_f32 v%d, v%d" % (106 + r, 106 + r))
    A("    s_nop 0")
    for r in range(6):
        A("    v_mul_f32 v%d, v%d, v%d" % (100 + r, 100 + r, 106 + r))
    for r in range(0, 6, 2):
        A("    v_cvt_pk_bf16_f32 v106, v%d, v%d" % (100 + r, 101 + r))
        A("    v_lshlrev_b32 v%d, 16, v106" % (100 + r))
        A("    v_and_b32 v%d, 0xffff0000, v106" % (101 + r))
    A("    v_mov_b32 v96, 0")
    A("    v_mov_b32 v97, 0")
    for r in range(6):
        A("    v_lshlrev_b32 v106, 16, v%d" % (88 + r))
        A("    v_and_b32 v107, 0xffff0000, v%d" % (88 + r))
        A("    v_fmac_f32 v96, v%d, v106" % (100 + r))
        A("    v_fmac_f32 v97, v%d, v107" % (100 + r))
    A("    v_cvt_pk_bf16_f32 v98, v96, v97")
    A("    v_lshlrev_b32 v96, 16, v98")
    A("    v_and_b32 v97, 0xffff0000, v98")
    A("    v_mul_f32 v96, s30, v96")
    A("    v_mul_f32 v97, s30, v97")
    A("    v_exp_f32 v96, v96")
    A("    v_exp_f32 v97, v97")
    A("    s_nop 0")
    A("    v_add_f32 v96, 1.0, v96")
    A("    v_add_f32 v97, 1.0, v97")
    A("    v_rcp_f32 v96, v96")
    A("    v_rcp_f32 v97, v97")
    A("    s_nop 0")
    A("    v_cvt_pk_bf16_f32 v98, v96, v97")
    A("    v_lshlrev_b32 v96, 16, v98")
    A("    v_and_b32 v97, 0xffff0000, v98")
    A("    v_lshlrev_b32 v12, 3, v2")
    A("    s_mov_b32 exec_hi, 0xffff")
    A("    ds_write_b64 v12, v[96:97] offset:512")
    A("    s_mov_b64 exec, -1")
    A("    s_waitcnt lgkmcnt(0)")
    stamp(10 if stamps == 2 else 8)
    A("L_waitg:")
    A("    s_barrier")
    A("    v_and_b32 v14, 15, v2")
    A("    v_mul_u32_u24 v12, 24, v14")
    A("    ds_read_b64 v[96:97], v12 offset:512")
    A("    ds_read_b64 v[98:99], v12 offset:520")
    A("    ds_read_b64 v[100:101], v12 offset:528")
    A("    s_waitcnt lgkmcnt(0)")
    A("    s_mov_b32 s24, 0")
    for i in range(NLOAD):
        b = 16 + 4 * i
        for d in range(3):
            A("    v_lshlrev_b32 v102, 16, v%d" % (b + d))
            A("    v_and_b32 v103, 0xffff0000, v%d" % (b + d))
            A("    v_mul_f32 v102, v102, v%d" % (96 + 2 * d))
            A("    v_mul_f32 v103, v103, v%d" % (97 + 2 * d))
            A("    v_cvt_pk_bf16_f32 v%d, v102, v103" % (b + d))
        if not nostore:
            A("    buffer_store_dwordx3 v[%d:%d], v3, s[20:23], s24 offen%s"
              % (b, b + 2, store_flags))
        A("    s_add_u32 s24, s24, %d" % lstep)
    if wstamps:
        A("    s_waitcnt vmcnt(0)")
        A("    s_memrealtime s[50:51]")
        A("    s_waitcnt lgkmcnt(0)")
        A("    v_lshl_add_u32 v9, s2, 4, v1")
        A("    v_lshlrev_b32 v9, 4, v9")
        A("    v_add_u32 v9, 0x100000, v9")
        A("    v_mov_b32 v4, s46")
        A("    v_mov_b32 v5, s48")
        A("    v_mov_b32 v6, s50")
        A("    v_mov_b32 v7, 0")
        A("    s_mov_b64 exec, 1")
        A("    global_store_dwordx4 v9, v[4:7], s[14:15]")
    if stamps == 1:
        A("    s_cmp_lg_u32 s26, 0")
        A("    s_cbranch_scc1 L_end")
        A("    s_waitcnt vmcnt(0)")
        stamp(10)
    A("L_end:")
    A("    s_endpgm")
    A('.section .rodata,"a"')
    A(".p2align 6")
    A(".amdhsa_kernel %s" % KNAME)
    A("  .amdhsa_next_free_vgpr 128")
    A("  .amdhsa_next_free_sgpr 56")
    A("  .amdhsa_accum_offset 128")
    A("  .amdhsa_group_segment_fixed_size 0")
    A("  .amdhsa_kernarg_size 48")
    A("  .amdhsa_user_sgpr_count 2")
    A("  .amdhsa_user_sgpr_kernarg_segment_ptr 1")
    A("  .amdhsa_system_sgpr_workgroup_id_x 1")
    A(".end_amdhsa_kernel")
    return "\n".join(L) + "\n"

if __name__ == "__main__":
    out = sys.argv[1] if len(sys.argv) > 1 else "standalone__channel_attn_se__vision.s"
    kw = {}
    for a in sys.argv[2:]:
        k, v = a.split("=")
        kw[k] = v if k.endswith("flags") else int(v)
    open(out, "w").write(gen(**kw))
```

```python
import sys

KNAME = "standalone__channel_attn_se__vision_kernel"
NWG = 256
WG_BYTES = 196608
WAVE_BYTES = 12288
NLOAD = 16
NREP = 16
REP_STRIDE = 512
CNT_BASE = 8192
CNT_STRIDE = 128
LOAD_FLAGS = ""
STORE_FLAGS = ""

def gen(load_flags=LOAD_FLAGS, store_flags=STORE_FLAGS, poll_at=11, stamps=False, mode=0, wstamps=0, nostore=0, psleep=1, apoll=0):
    L = []
    A = L.append
    def stamp(slot):
        if not stamps:
            return
        if slot == 2:
            A("    s_memrealtime s[44:45]")
            A("    s_waitcnt lgkmcnt(0)")
            return
        lab = "L_st%d" % slot
        A("    s_and_b32 s40, s2, 63")
        A("    s_cmp_lg_u32 s40, 3")
        A("    s_cbranch_scc1 %s" % lab)
        A("    s_memrealtime s[40:41]")
        A("    s_waitcnt lgkmcnt(0)")
        A("    s_sub_u32 s40, s40, s44")
        A("    s_lshr_b32 s41, s2, 6")
        A("    s_lshl_b32 s41, s41, 2")
        A("    s_mov_b64 s[42:43], exec")
        A("    s_mov_b64 exec, 1")
        A("    v_mov_b32 v110, s40")
        A("    v_mov_b32 v112, s41")
        base = {4: 0, 6: 4, 8: 8, 10: 12}[slot]
        A("    global_store_dword v112, v110, s[12:13] offset:%d" % (4 * base))
        A("    s_mov_b64 exec, s[42:43]")
        A("%s:" % lab)
    A("; @launch grid=(%d,1,1) block=(1024,1,1) lds=1024" % NWG)
    A('.amdgcn_target "amdgcn-amd-amdhsa--gfx950"')
    A(".text")
    A(".globl %s" % KNAME)
    A(".p2align 8")
    A(".type %s,@function" % KNAME)
    A("%s:" % KNAME)
    A("    s_cmp_ge_u32 s2, %d" % NWG)
    A("    s_cbranch_scc1 L_end")
    A("    s_load_dwordx4 s[4:7], s[0:1], 0")
    A("    s_load_dwordx4 s[8:11], s[0:1], 16")
    A("    s_load_dwordx4 s[12:15], s[0:1], 32")
    if wstamps:
        A("    s_memrealtime s[46:47]")
    A("    v_lshrrev_b32 v1, 6, v0")
    A("    v_and_b32 v2, 63, v0")
    A("    v_mul_u32_u24 v3, 12, v2")
    A("    v_readfirstlane_b32 s26, v1")
    A("    v_and_b32 v14, 15, v2")
    A("    v_mov_b32 v15, 0x3f80")
    A("    v_mov_b32 v13, 0x3f800000")
    for r in range(4):
        A("    v_mov_b32 v%d, 0" % (4 + r))
    for r in range(4):
        A("    v_cmp_eq_u32 vcc, %d, v14" % (2 * r))
        A("    s_nop 1")
        A("    v_cndmask_b32 v%d, v%d, v15, vcc" % (4 + r, 4 + r))
        A("    v_cmp_eq_u32 vcc, %d, v14" % (2 * r + 1))
        A("    s_nop 1")
        A("    v_cndmask_b32 v%d, v%d, v13, vcc" % (4 + r, 4 + r))
    for r in range(4):
        A("    v_mov_b32 v%d, 0" % (8 + r))
    for i in range(NLOAD):
        A("    v_mov_b32 v%d, 0" % (16 + 4 * i + 3))
    if mode == 0:
        wave_mul, wg_mul, lstep = WAVE_BYTES, WG_BYTES, 768
    elif mode == 1:
        wave_mul, wg_mul, lstep = 768, WG_BYTES, 12288
    else:
        wave_mul, wg_mul, lstep = 768, 12288, 12288 * NWG
    A("    s_mul_i32 s27, s26, %d" % wave_mul)
    A("    v_add_u32 v3, s27, v3")
    A("    s_mul_i32 s28, s2, %d" % wg_mul)
    A("    s_waitcnt lgkmcnt(0)")
    A("    s_add_u32 s16, s4, s28")
    A("    s_addc_u32 s17, s5, 0")
    A("    s_sub_u32 s18, %d, s28" % (NWG * WG_BYTES))
    A("    s_mov_b32 s19, 0x00020000")
    A("    s_add_u32 s20, s10, s28")
    A("    s_addc_u32 s21, s11, 0")
    A("    s_mov_b32 s22, s18")
    A("    s_mov_b32 s23, 0x00020000")
    if stamps:
        A("    s_cmp_lg_u32 s26, 0")
        A("    s_cbranch_scc1 L_nostamp0")
        stamp(2)
        A("L_nostamp0:")
    A("    s_cmp_lg_u32 s2, 0")
    A("    s_cbranch_scc1 L_nozero")
    A("    v_lshlrev_b32 v14, 4, v0")
    A("    v_mov_b32 v96, 0")
    A("    v_mov_b32 v97, 0")
    A("    v_mov_b32 v98, 0")
    A("    v_mov_b32 v99, 0")
    A("    global_store_dwordx4 v14, v[96:99], s[14:15] sc1")
    A("L_nozero:")
    A("    s_cmp_lg_u32 s26, 0")
    A("    s_cbranch_scc1 L_noweights")
    A("    s_mov_b32 s32, s6")
    A("    s_mov_b32 s33, s7")
    A("    s_mov_b32 s34, 1152")
    A("    s_mov_b32 s35, 0x00020000")
    A("    s_mov_b32 s36, s8")
    A("    s_mov_b32 s37, s9")
    A("    s_mov_b32 s38, 1152")
    A("    s_mov_b32 s39, 0x00020000")
    A("    v_mul_u32_u24 v14, 24, v2")
    A("    v_lshlrev_b32 v15, 2, v2")
    A("    buffer_load_dwordx3 v[80:82], v14, s[32:35], 0 offen")
    A("    buffer_load_dwordx3 v[84:86], v14, s[32:35], 0 offen offset:12")
    for r in range(6):
        A("    buffer_load_dword v%d, v15, s[36:39], 0 offen offset:%d" % (88 + r, 192 * r))
    A("L_noweights:")
    A("    s_mov_b32 s24, 0")
    for i in range(NLOAD):
        A("    buffer_load_dwordx3 v[%d:%d], v3, s[16:19], s24 offen%s"
          % (16 + 4 * i, 16 + 4 * i + 2, load_flags))
        A("    s_add_u32 s24, s24, %d" % lstep)
    A("    v_lshlrev_b32 v12, 2, v0")
    A("    v_mov_b32 v14, 0")
    A("    v_cmp_gt_u32 vcc, 128, v0")
    A("    s_and_saveexec_b64 s[30:31], vcc")
    A("    ds_write_b32 v12, v14")
    A("    s_mov_b64 exec, s[30:31]")
    A("    s_cmp_lg_u32 s2, 0")
    A("    s_cbranch_scc1 L_nozwait")
    A("    s_waitcnt vmcnt(%d)" % NLOAD)
    A("L_nozwait:")
    A("    s_waitcnt lgkmcnt(0)")
    A("    s_barrier")
    A("    s_or_b32 s29, s2, s26")
    A("    s_cmp_lg_u32 s29, 0")
    A("    s_cbranch_scc1 L_noflag")
    A("    v_mov_b32 v14, 0")
    A("    v_mov_b32 v15, 1")
    A("    s_mov_b64 s[30:31], exec")
    A("    s_mov_b64 exec, 1")
    A("    global_atomic_add v14, v15, s[12:13] sc1")
    A("    s_mov_b64 exec, s[30:31]")
    A("L_noflag:")
    A("    v_and_b32 v14, 15, v2")
    A("    v_mul_u32_u24 v12, 24, v14")
    A("    v_lshrrev_b32 v14, 4, v2")
    A("    v_lshl_add_u32 v12, v14, 4, v12")
    A("    v_mov_b32 v14, 0")
    extra = 0
    for i in range(NLOAD):
        A("    s_waitcnt vmcnt(%d)" % (NLOAD - 1 - i + extra))
        A("    v_mfma_f32_16x16x32_bf16 v[8:11], v[4:7], v[%d:%d], v[8:11]" % (16 + 4 * i, 16 + 4 * i + 3))
        if i == poll_at:
            A("    global_load_dword v13, v14, s[12:13] sc1")
            extra = 1
    if wstamps:
        A("    s_memrealtime s[48:49]")
    A("    s_nop 7")
    A("    s_mov_b32 exec_hi, 0")
    A("    ds_add_f32 v12, v8")
    A("    ds_add_f32 v12, v9 offset:4")
    A("    s_mov_b32 exec_lo, 0xffff")
    A("    ds_add_f32 v12, v10 offset:8")
    A("    ds_add_f32 v12, v11 offset:12")
    A("    s_mov_b64 exec, -1")
    A("    s_waitcnt lgkmcnt(0)")
    A("    s_barrier")
    A("    s_cmp_lg_u32 s26, 0")
    A("    s_cbranch_scc1 L_waitg")
    A("    s_waitcnt vmcnt(0)")
    stamp(4)
    A("    v_lshlrev_b32 v12, 2, v2")
    A("    ds_read_b32 v94, v12")
    A("    ds_read_b32 v95, v12 offset:256")
    A("    s_mov_b32 s31, 0")
    A("L_flagspin:")
    A("    v_readfirstlane_b32 s30, v13")
    A("    s_cmp_lg_u32 s30, 0")
    A("    s_cbranch_scc1 L_flagok")
    A("    s_add_u32 s31, s31, 1")
    A("    s_cmp_gt_u32 s31, 0x40000")
    A("    s_cbranch_scc1 L_flagok")
    A("    s_sleep 1")
    A("    global_load_dword v13, v14, s[12:13] sc1")
    A("    s_waitcnt vmcnt(0)")
    A("    s_branch L_flagspin")
    A("L_flagok:")
    A("    s_and_b32 s29, s2, %d" % (NREP - 1))
    A("    s_mul_i32 s30, s29, %d" % REP_STRIDE)
    A("    v_add_u32 v15, s30, v12")
    A("    s_waitcnt lgkmcnt(0)")
    A("    global_atomic_add_f32 v15, v94, s[14:15] sc1")
    A("    s_mov_b32 exec_hi, 0")
    A("    global_atomic_add_f32 v15, v95, s[14:15] offset:256 sc1")
    A("    s_mov_b64 exec, -1")
    A("    s_mul_i32 s30, s29, %d" % CNT_STRIDE)
    A("    s_add_u32 s30, s30, %d" % CNT_BASE)
    A("    v_mov_b32 v14, s30")
    A("    v_mov_b32 v15, 1")
    A("    v_lshlrev_b32 v12, 7, v2")
    A("    v_add_u32 v12, %d, v12" % CNT_BASE)
    A("    s_waitcnt vmcnt(0)")
    if stamps == 2:
        stamp(6)
    A("    s_mov_b64 exec, 1")
    A("    global_atomic_add v14, v15, s[14:15] sc1")
    A("    s_mov_b32 exec_lo, 0xffff")
    A("    s_mov_b32 s31, 0")
    A("L_poll:")
    if apoll:
        A("    v_mov_b32 v15, 0")
        A("    global_atomic_add v13, v12, v15, s[14:15] sc0 sc1")
    else:
        A("    global_load_dword v13, v12, s[14:15] sc1")
    A("    s_waitcnt vmcnt(0)")
    A("    v_cmp_ne_u32 vcc, %d, v13" % (NWG // NREP))
    A("    s_cbranch_vccz L_polldone")
    A("    s_add_u32 s31, s31, 1")
    A("    s_cmp_gt_u32 s31, 0x40000")
    A("    s_cbranch_scc1 L_polldone")
    A("    s_sleep %d" % psleep)
    A("    s_branch L_poll")
    A("L_polldone:")
    A("    s_mov_b64 exec, -1")
    stamp(8 if stamps == 2 else 6)
    A("    v_lshlrev_b32 v12, 3, v2")
    A("    v_add_u32 v14, 4096, v12")
    for r in range(NREP):
        base = "v12" if r < 8 else "v14"
        A("    global_load_dwordx2 v[%d:%d], %s, s[14:15] offset:%d sc1"
          % (96 + 2 * r, 97 + 2 * r, base, REP_STRIDE * (r % 8)))
    A("    s_waitcnt vmcnt(0)")
    step = 1
    while step < NREP:
        for r in range(0, NREP, 2 * step):
            A("    v_add_f32 v%d, v%d, v%d" % (96 + 2 * r, 96 + 2 * r, 96 + 2 * (r + step)))
            A("    v_add_f32 v%d, v%d, v%d" % (97 + 2 * r, 97 + 2 * r, 97 + 2 * (r + step)))
        step *= 2
    A("    v_mul_f32 v96, 0x36800000, v96")
    A("    v_mul_f32 v97, 0x36800000, v97")
    A("    v_cvt_pk_bf16_f32 v98, v96, v97")
    A("    v_lshlrev_b32 v96, 16, v98")
    A("    v_and_b32 v97, 0xffff0000, v98")
    for r in range(6):
        src0 = 80 + r // 2
        src1 = 84 + r // 2
        if r % 2 == 0:
            A("    v_lshlrev_b32 v106, 16, v%d" % src0)
            A("    v_lshlrev_b32 v107, 16, v%d" % src1)
        else:
            A("    v_and_b32 v106, 0xffff0000, v%d" % src0)
            A("    v_and_b32 v107, 0xffff0000, v%d" % src1)
        A("    v_mul_f32 v%d, v96, v106" % (100 + r))
        A("    v_fmac_f32 v%d, v97, v107" % (100 + r))
    for st in (1, 2, 4, 8):
        for r in range(6):
            A("    v_add_f32_dpp v%d, v%d, v%d row_ror:%d row_mask:0xf bank_mask:0xf"
              % (106 + r, 100 + r, 100 + r, st))
        A("    s_nop 1")
        for r in range(6):
            A("    v_mov_b32 v%d, v%d" % (100 + r, 106 + r))
        A("    s_nop 1")
    for op in ("v_permlane16_swap_b32", "v_permlane32_swap_b32"):
        for r in range(6):
            A("    v_mov_b32 v%d, v%d" % (106 + r, 100 + r))
        A("    s_nop 1")
        for r in range(6):
            A("    %s v%d, v%d" % (op, 100 + r, 106 + r))
        A("    s_nop 1")
        for r in range(6):
            A("    v_add_f32 v%d, v%d, v%d" % (100 + r, 100 + r, 106 + r))
    A("    s_mov_b32 s30, 0xbfb8aa3b")
    for r in range(0, 6, 2):
        A("    v_cvt_pk_bf16_f32 v106, v%d, v%d" % (100 + r, 101 + r))
        A("    v_lshlrev_b32 v%d, 16, v106" % (100 + r))
        A("    v_and_b32 v%d, 0xffff0000, v106" % (101 + r))
    for r in range(6):
        A("    v_mul_f32 v%d, s30, v%d" % (106 + r, 100 + r))
    for r in range(6):
        A("    v_exp_f32 v%d, v%d" % (106 + r, 106 + r))
    A("    s_nop 0")
    for r in range(6):
        A("    v_add_f32 v%d, 1.0, v%d" % (106 + r, 106 + r))
    for r in range(6):
        A("    v_rcp_f32 v%d, v%d" % (106 + r, 106 + r))
    A("    s_nop 0")
    for r in range(6):
        A("    v_mul_f32 v%d, v%d, v%d" % (100 + r, 100 + r, 106 + r))
    for r in range(0, 6, 2):
        A("    v_cvt_pk_bf16_f32 v106, v%d, v%d" % (100 + r, 101 + r))
        A("    v_lshlrev_b32 v%d, 16, v106" % (100 + r))
        A("    v_and_b32 v%d, 0xffff0000, v106" % (101 + r))
    A("    v_mov_b32 v96, 0")
    A("    v_mov_b32 v97, 0")
    for r in range(6):
        A("    v_lshlrev_b32 v106, 16, v%d" % (88 + r))
        A("    v_and_b32 v107, 0xffff0000, v%d" % (88 + r))
        A("    v_fmac_f32 v96, v%d, v106" % (100 + r))
        A("    v_fmac_f32 v97, v%d, v107" % (100 + r))
    A("    v_cvt_pk_bf16_f32 v98, v96, v97")
    A("    v_lshlrev_b32 v96, 16, v98")
    A("    v_and_b32 v97, 0xffff0000, v98")
    A("    v_mul_f32 v96, s30, v96")
    A("    v_mul_f32 v97, s30, v97")
    A("    v_exp_f32 v96, v96")
    A("    v_exp_f32 v97, v97")
    A("    s_nop 0")
    A("    v_add_f32 v96, 1.0, v96")
    A("    v_add_f32 v97, 1.0, v97")
    A("    v_rcp_f32 v96, v96")
    A("    v_rcp_f32 v97, v97")
    A("    s_nop 0")
    A("    v_cvt_pk_bf16_f32 v98, v96, v97")
    A("    v_lshlrev_b32 v96, 16, v98")
    A("    v_and_b32 v97, 0xffff0000, v98")
    A("    v_lshlrev_b32 v12, 3, v2")
    A("    s_mov_b32 exec_hi, 0xffff")
    A("    ds_write_b64 v12, v[96:97] offset:512")
    A("    s_mov_b64 exec, -1")
    A("    s_waitcnt lgkmcnt(0)")
    stamp(10 if stamps == 2 else 8)
    A("L_waitg:")
    A("    s_barrier")
    A("    v_and_b32 v14, 15, v2")
    A("    v_mul_u32_u24 v12, 24, v14")
    A("    ds_read_b64 v[96:97], v12 offset:512")
    A("    ds_read_b64 v[98:99], v12 offset:520")
    A("    ds_read_b64 v[100:101], v12 offset:528")
    A("    s_waitcnt lgkmcnt(0)")
    A("    s_mov_b32 s24, 0")
    for i in range(NLOAD):
        b = 16 + 4 * i
        for d in range(3):
            A("    v_lshlrev_b32 v102, 16, v%d" % (b + d))
            A("    v_and_b32 v103, 0xffff0000, v%d" % (b + d))
            A("    v_mul_f32 v102, v102, v%d" % (96 + 2 * d))
            A("    v_mul_f32 v103, v103, v%d" % (97 + 2 * d))
            A("    v_cvt_pk_bf16_f32 v%d, v102, v103" % (b + d))
        if not nostore:
            A("    buffer_store_dwordx3 v[%d:%d], v3, s[20:23], s24 offen%s"
              % (b, b + 2, store_flags))
        A("    s_add_u32 s24, s24, %d" % lstep)
    if wstamps:
        A("    s_waitcnt vmcnt(0)")
        A("    s_memrealtime s[50:51]")
        A("    s_waitcnt lgkmcnt(0)")
        A("    v_lshl_add_u32 v9, s2, 4, v1")
        A("    v_lshlrev_b32 v9, 4, v9")
        A("    v_add_u32 v9, 0x100000, v9")
        A("    v_mov_b32 v4, s46")
        A("    v_mov_b32 v5, s48")
        A("    v_mov_b32 v6, s50")
        A("    v_mov_b32 v7, 0")
        A("    s_mov_b64 exec, 1")
        A("    global_store_dwordx4 v9, v[4:7], s[14:15]")
    if stamps == 1:
        A("    s_cmp_lg_u32 s26, 0")
        A("    s_cbranch_scc1 L_end")
        A("    s_waitcnt vmcnt(0)")
        stamp(10)
    A("L_end:")
    A("    s_endpgm")
    A('.section .rodata,"a"')
    A(".p2align 6")
    A(".amdhsa_kernel %s" % KNAME)
    A("  .amdhsa_next_free_vgpr 128")
    A("  .amdhsa_next_free_sgpr 56")
    A("  .amdhsa_accum_offset 128")
    A("  .amdhsa_group_segment_fixed_size 0")
    A("  .amdhsa_kernarg_size 48")
    A("  .amdhsa_user_sgpr_count 2")
    A("  .amdhsa_user_sgpr_kernarg_segment_ptr 1")
    A("  .amdhsa_system_sgpr_workgroup_id_x 1")
    A(".end_amdhsa_kernel")
    return "\n".join(L) + "\n"

if __name__ == "__main__":
    out = sys.argv[1] if len(sys.argv) > 1 else "standalone__channel_attn_se__vision.s"
    kw = {}
    for a in sys.argv[2:]:
        k, v = a.split("=")
        kw[k] = v if k.endswith("flags") else int(v)
    open(out, "w").write(gen(**kw))
```

```python
import sys

KNAME = "standalone__channel_attn_se__vision_kernel"
NWG = 256
WG_BYTES = 196608
WAVE_BYTES = 12288
NLOAD = 16
NREP = 16
REP_STRIDE = 512
CNT_BASE = 8192
CNT_STRIDE = 128
LOAD_FLAGS = ""
STORE_FLAGS = ""

def gen(load_flags=LOAD_FLAGS, store_flags=STORE_FLAGS, poll_at=11, stamps=False, mode=0, wstamps=0, nostore=0, psleep=1, apoll=0, goflag=0):
    L = []
    A = L.append
    def stamp(slot):
        if not stamps:
            return
        if slot == 2:
            A("    s_memrealtime s[44:45]")
            A("    s_waitcnt lgkmcnt(0)")
            return
        lab = "L_st%d" % slot
        A("    s_and_b32 s40, s2, 63")
        A("    s_cmp_lg_u32 s40, 3")
        A("    s_cbranch_scc1 %s" % lab)
        A("    s_memrealtime s[40:41]")
        A("    s_waitcnt lgkmcnt(0)")
        A("    s_sub_u32 s40, s40, s44")
        A("    s_lshr_b32 s41, s2, 6")
        A("    s_lshl_b32 s41, s41, 2")
        A("    s_mov_b64 s[42:43], exec")
        A("    s_mov_b64 exec, 1")
        A("    v_mov_b32 v110, s40")
        A("    v_mov_b32 v112, s41")
        base = {4: 0, 6: 4, 8: 8, 10: 12}[slot]
        A("    global_store_dword v112, v110, s[12:13] offset:%d" % (4 * base))
        A("    s_mov_b64 exec, s[42:43]")
        A("%s:" % lab)
    A("; @launch grid=(%d,1,1) block=(1024,1,1) lds=1024" % NWG)
    A('.amdgcn_target "amdgcn-amd-amdhsa--gfx950"')
    A(".text")
    A(".globl %s" % KNAME)
    A(".p2align 8")
    A(".type %s,@function" % KNAME)
    A("%s:" % KNAME)
    A("    s_cmp_ge_u32 s2, %d" % NWG)
    A("    s_cbranch_scc1 L_end")
    A("    s_load_dwordx4 s[4:7], s[0:1], 0")
    A("    s_load_dwordx4 s[8:11], s[0:1], 16")
    A("    s_load_dwordx4 s[12:15], s[0:1], 32")
    if wstamps:
        A("    s_memrealtime s[46:47]")
    A("    v_lshrrev_b32 v1, 6, v0")
    A("    v_and_b32 v2, 63, v0")
    A("    v_mul_u32_u24 v3, 12, v2")
    A("    v_readfirstlane_b32 s26, v1")
    A("    v_and_b32 v14, 15, v2")
    A("    v_mov_b32 v15, 0x3f80")
    A("    v_mov_b32 v13, 0x3f800000")
    for r in range(4):
        A("    v_mov_b32 v%d, 0" % (4 + r))
    for r in range(4):
        A("    v_cmp_eq_u32 vcc, %d, v14" % (2 * r))
        A("    s_nop 1")
        A("    v_cndmask_b32 v%d, v%d, v15, vcc" % (4 + r, 4 + r))
        A("    v_cmp_eq_u32 vcc, %d, v14" % (2 * r + 1))
        A("    s_nop 1")
        A("    v_cndmask_b32 v%d, v%d, v13, vcc" % (4 + r, 4 + r))
    for r in range(4):
        A("    v_mov_b32 v%d, 0" % (8 + r))
    for i in range(NLOAD):
        A("    v_mov_b32 v%d, 0" % (16 + 4 * i + 3))
    if mode == 0:
        wave_mul, wg_mul, lstep = WAVE_BYTES, WG_BYTES, 768
    elif mode == 1:
        wave_mul, wg_mul, lstep = 768, WG_BYTES, 12288
    else:
        wave_mul, wg_mul, lstep = 768, 12288, 12288 * NWG
    A("    s_mul_i32 s27, s26, %d" % wave_mul)
    A("    v_add_u32 v3, s27, v3")
    A("    s_mul_i32 s28, s2, %d" % wg_mul)
    A("    s_waitcnt lgkmcnt(0)")
    A("    s_add_u32 s16, s4, s28")
    A("    s_addc_u32 s17, s5, 0")
    A("    s_sub_u32 s18, %d, s28" % (NWG * WG_BYTES))
    A("    s_mov_b32 s19, 0x00020000")
    A("    s_add_u32 s20, s10, s28")
    A("    s_addc_u32 s21, s11, 0")
    A("    s_mov_b32 s22, s18")
    A("    s_mov_b32 s23, 0x00020000")
    if stamps:
        A("    s_cmp_lg_u32 s26, 0")
        A("    s_cbranch_scc1 L_nostamp0")
        stamp(2)
        A("L_nostamp0:")
    A("    s_cmp_lg_u32 s2, 0")
    A("    s_cbranch_scc1 L_nozero")
    A("    v_lshlrev_b32 v14, 4, v0")
    A("    v_mov_b32 v96, 0")
    A("    v_mov_b32 v97, 0")
    A("    v_mov_b32 v98, 0")
    A("    v_mov_b32 v99, 0")
    A("    global_store_dwordx4 v14, v[96:99], s[14:15] sc1")
    A("L_nozero:")
    A("    s_cmp_lg_u32 s26, 0")
    A("    s_cbranch_scc1 L_noweights")
    A("    s_mov_b32 s32, s6")
    A("    s_mov_b32 s33, s7")
    A("    s_mov_b32 s34, 1152")
    A("    s_mov_b32 s35, 0x00020000")
    A("    s_mov_b32 s36, s8")
    A("    s_mov_b32 s37, s9")
    A("    s_mov_b32 s38, 1152")
    A("    s_mov_b32 s39, 0x00020000")
    A("    v_mul_u32_u24 v14, 24, v2")
    A("    v_lshlrev_b32 v15, 2, v2")
    A("    buffer_load_dwordx3 v[80:82], v14, s[32:35], 0 offen")
    A("    buffer_load_dwordx3 v[84:86], v14, s[32:35], 0 offen offset:12")
    for r in range(6):
        A("    buffer_load_dword v%d, v15, s[36:39], 0 offen offset:%d" % (88 + r, 192 * r))
    A("L_noweights:")
    A("    s_mov_b32 s24, 0")
    for i in range(NLOAD):
        A("    buffer_load_dwordx3 v[%d:%d], v3, s[16:19], s24 offen%s"
          % (16 + 4 * i, 16 + 4 * i + 2, load_flags))
        A("    s_add_u32 s24, s24, %d" % lstep)
    A("    v_lshlrev_b32 v12, 2, v0")
    A("    v_mov_b32 v14, 0")
    A("    v_cmp_gt_u32 vcc, 128, v0")
    A("    s_and_saveexec_b64 s[30:31], vcc")
    A("    ds_write_b32 v12, v14")
    A("    s_mov_b64 exec, s[30:31]")
    A("    s_cmp_lg_u32 s2, 0")
    A("    s_cbranch_scc1 L_nozwait")
    A("    s_waitcnt vmcnt(%d)" % NLOAD)
    A("L_nozwait:")
    A("    s_waitcnt lgkmcnt(0)")
    A("    s_barrier")
    A("    s_or_b32 s29, s2, s26")
    A("    s_cmp_lg_u32 s29, 0")
    A("    s_cbranch_scc1 L_noflag")
    A("    v_mov_b32 v14, 0")
    A("    v_mov_b32 v15, 1")
    A("    s_mov_b64 s[30:31], exec")
    A("    s_mov_b64 exec, 1")
    A("    global_atomic_add v14, v15, s[12:13] sc1")
    A("    s_mov_b64 exec, s[30:31]")
    A("L_noflag:")
    A("    v_and_b32 v14, 15, v2")
    A("    v_mul_u32_u24 v12, 24, v14")
    A("    v_lshrrev_b32 v14, 4, v2")
    A("    v_lshl_add_u32 v12, v14, 4, v12")
    A("    v_mov_b32 v14, 0")
    extra = 0
    for i in range(NLOAD):
        A("    s_waitcnt vmcnt(%d)" % (NLOAD - 1 - i + extra))
        A("    v_mfma_f32_16x16x32_bf16 v[8:11], v[4:7], v[%d:%d], v[8:11]" % (16 + 4 * i, 16 + 4 * i + 3))
        if i == poll_at:
            A("    global_load_dword v13, v14, s[12:13] sc1")
            extra = 1
    if wstamps:
        A("    s_memrealtime s[48:49]")
    A("    s_nop 7")
    A("    s_mov_b32 exec_hi, 0")
    A("    ds_add_f32 v12, v8")
    A("    ds_add_f32 v12, v9 offset:4")
    A("    s_mov_b32 exec_lo, 0xffff")
    A("    ds_add_f32 v12, v10 offset:8")
    A("    ds_add_f32 v12, v11 offset:12")
    A("    s_mov_b64 exec, -1")
    A("    s_waitcnt lgkmcnt(0)")
    A("    s_barrier")
    A("    s_cmp_lg_u32 s26, 0")
    A("    s_cbranch_scc1 L_waitg")
    A("    s_waitcnt vmcnt(0)")
    stamp(4)
    A("    v_lshlrev_b32 v12, 2, v2")
    A("    ds_read_b32 v94, v12")
    A("    ds_read_b32 v95, v12 offset:256")
    A("    s_mov_b32 s31, 0")
    A("L_flagspin:")
    A("    v_readfirstlane_b32 s30, v13")
    A("    s_cmp_lg_u32 s30, 0")
    A("    s_cbranch_scc1 L_flagok")
    A("    s_add_u32 s31, s31, 1")
    A("    s_cmp_gt_u32 s31, 0x40000")
    A("    s_cbranch_scc1 L_flagok")
    A("    s_sleep 1")
    A("    global_load_dword v13, v14, s[12:13] sc1")
    A("    s_waitcnt vmcnt(0)")
    A("    s_branch L_flagspin")
    A("L_flagok:")
    A("    s_and_b32 s29, s2, %d" % (NREP - 1))
    A("    s_mul_i32 s30, s29, %d" % REP_STRIDE)
    A("    v_add_u32 v15, s30, v12")
    A("    s_waitcnt lgkmcnt(0)")
    A("    global_atomic_add_f32 v15, v94, s[14:15] sc1")
    A("    s_mov_b32 exec_hi, 0")
    A("    global_atomic_add_f32 v15, v95, s[14:15] offset:256 sc1")
    A("    s_mov_b64 exec, -1")
    A("    s_mul_i32 s30, s29, %d" % CNT_STRIDE)
    A("    s_add_u32 s30, s30, %d" % CNT_BASE)
    A("    v_mov_b32 v14, s30")
    A("    v_mov_b32 v15, 1")
    A("    v_lshlrev_b32 v12, 7, v2")
    A("    v_add_u32 v12, %d, v12" % CNT_BASE)
    A("    s_waitcnt vmcnt(0)")
    if stamps == 2:
        stamp(6)
    if goflag:
        A("    s_mov_b64 exec, 1")
        A("    global_atomic_add v13, v14, v15, s[14:15] sc0 sc1")
        A("    s_waitcnt vmcnt(0)")
        A("    v_readfirstlane_b32 s30, v13")
        A("    s_cmp_lg_u32 s30, %d" % (NWG // NREP - 1))
        A("    s_cbranch_scc1 L_gowait")
        A("    v_mov_b32 v14, 10240")
        A("    global_atomic_add v13, v14, v15, s[14:15] sc0 sc1")
        A("    s_waitcnt vmcnt(0)")
        A("    v_readfirstlane_b32 s30, v13")
        A("    s_cmp_lg_u32 s30, %d" % (NREP - 1))
        A("    s_cbranch_scc1 L_gowait")
        A("    v_add_u32 v12, 4096, v12")
        A("    s_mov_b32 exec_lo, 0xffff")
        A("    global_store_dword v12, v15, s[14:15] sc1")
        A("    s_mov_b64 exec, 1")
        A("L_gowait:")
        A("    s_lshl_b32 s30, s29, 7")
        A("    s_add_u32 s30, s30, 12288")
        A("    v_mov_b32 v12, s30")
        A("    s_mov_b32 s31, 0")
        A("L_poll:")
        A("    global_load_dword v13, v12, s[14:15] sc1")
        A("    s_waitcnt vmcnt(0)")
        A("    v_cmp_ne_u32 vcc, 1, v13")
        A("    s_cbranch_vccz L_polldone")
        A("    s_add_u32 s31, s31, 1")
        A("    s_cmp_gt_u32 s31, 0x40000")
        A("    s_cbranch_scc1 L_polldone")
        A("    s_sleep %d" % psleep)
        A("    s_branch L_poll")
    else:
        A("    s_mov_b64 exec, 1")
        A("    global_atomic_add v14, v15, s[14:15] sc1")
        A("    s_mov_b32 exec_lo, 0xffff")
        A("    s_mov_b32 s31, 0")
        A("L_poll:")
        if apoll:
            A("    v_mov_b32 v15, 0")
            A("    global_atomic_add v13, v12, v15, s[14:15] sc0 sc1")
        else:
            A("    global_load_dword v13, v12, s[14:15] sc1")
        A("    s_waitcnt vmcnt(0)")
        A("    v_cmp_ne_u32 vcc, %d, v13" % (NWG // NREP))
        A("    s_cbranch_vccz L_polldone")
        A("    s_add_u32 s31, s31, 1")
        A("    s_cmp_gt_u32 s31, 0x40000")
        A("    s_cbranch_scc1 L_polldone")
        A("    s_sleep %d" % psleep)
        A("    s_branch L_poll")
    A("L_polldone:")
    A("    s_mov_b64 exec, -1")
    stamp(8 if stamps == 2 else 6)
    A("    v_lshlrev_b32 v12, 3, v2")
    A("    v_add_u32 v14, 4096, v12")
    for r in range(NREP):
        base = "v12" if r < 8 else "v14"
        A("    global_load_dwordx2 v[%d:%d], %s, s[14:15] offset:%d sc1"
          % (96 + 2 * r, 97 + 2 * r, base, REP_STRIDE * (r % 8)))
    A("    s_waitcnt vmcnt(0)")
    step = 1
    while step < NREP:
        for r in range(0, NREP, 2 * step):
            A("    v_add_f32 v%d, v%d, v%d" % (96 + 2 * r, 96 + 2 * r, 96 + 2 * (r + step)))
            A("    v_add_f32 v%d, v%d, v%d" % (97 + 2 * r, 97 + 2 * r, 97 + 2 * (r + step)))
        step *= 2
    A("    v_mul_f32 v96, 0x36800000, v96")
    A("    v_mul_f32 v97, 0x36800000, v97")
    A("    v_cvt_pk_bf16_f32 v98, v96, v97")
    A("    v_lshlrev_b32 v96, 16, v98")
    A("    v_and_b32 v97, 0xffff0000, v98")
    for r in range(6):
        src0 = 80 + r // 2
        src1 = 84 + r // 2
        if r % 2 == 0:
            A("    v_lshlrev_b32 v106, 16, v%d" % src0)
            A("    v_lshlrev_b32 v107, 16, v%d" % src1)
        else:
            A("    v_and_b32 v106, 0xffff0000, v%d" % src0)
            A("    v_and_b32 v107, 0xffff0000, v%d" % src1)
        A("    v_mul_f32 v%d, v96, v106" % (100 + r))
        A("    v_fmac_f32 v%d, v97, v107" % (100 + r))
    for st in (1, 2, 4, 8):
        for r in range(6):
            A("    v_add_f32_dpp v%d, v%d, v%d row_ror:%d row_mask:0xf bank_mask:0xf"
              % (106 + r, 100 + r, 100 + r, st))
        A("    s_nop 1")
        for r in range(6):
            A("    v_mov_b32 v%d, v%d" % (100 + r, 106 + r))
        A("    s_nop 1")
    for op in ("v_permlane16_swap_b32", "v_permlane32_swap_b32"):
        for r in range(6):
            A("    v_mov_b32 v%d, v%d" % (106 + r, 100 + r))
        A("    s_nop 1")
        for r in range(6):
            A("    %s v%d, v%d" % (op, 100 + r, 106 + r))
        A("    s_nop 1")
        for r in range(6):
            A("    v_add_f32 v%d, v%d, v%d" % (100 + r, 100 + r, 106 + r))
    A("    s_mov_b32 s30, 0xbfb8aa3b")
    for r in range(0, 6, 2):
        A("    v_cvt_pk_bf16_f32 v106, v%d, v%d" % (100 + r, 101 + r))
        A("    v_lshlrev_b32 v%d, 16, v106" % (100 + r))
        A("    v_and_b32 v%d, 0xffff0000, v106" % (101 + r))
    for r in range(6):
        A("    v_mul_f32 v%d, s30, v%d" % (106 + r, 100 + r))
    for r in range(6):
        A("    v_exp_f32 v%d, v%d" % (106 + r, 106 + r))
    A("    s_nop 0")
    for r in range(6):
        A("    v_add_f32 v%d, 1.0, v%d" % (106 + r, 106 + r))
    for r in range(6):
        A("    v_rcp_f32 v%d, v%d" % (106 + r, 106 + r))
    A("    s_nop 0")
    for r in range(6):
        A("    v_mul_f32 v%d, v%d, v%d" % (100 + r, 100 + r, 106 + r))
    for r in range(0, 6, 2):
        A("    v_cvt_pk_bf16_f32 v106, v%d, v%d" % (100 + r, 101 + r))
        A("    v_lshlrev_b32 v%d, 16, v106" % (100 + r))
        A("    v_and_b32 v%d, 0xffff0000, v106" % (101 + r))
    A("    v_mov_b32 v96, 0")
    A("    v_mov_b32 v97, 0")
    for r in range(6):
        A("    v_lshlrev_b32 v106, 16, v%d" % (88 + r))
        A("    v_and_b32 v107, 0xffff0000, v%d" % (88 + r))
        A("    v_fmac_f32 v96, v%d, v106" % (100 + r))
        A("    v_fmac_f32 v97, v%d, v107" % (100 + r))
    A("    v_cvt_pk_bf16_f32 v98, v96, v97")
    A("    v_lshlrev_b32 v96, 16, v98")
    A("    v_and_b32 v97, 0xffff0000, v98")
    A("    v_mul_f32 v96, s30, v96")
    A("    v_mul_f32 v97, s30, v97")
    A("    v_exp_f32 v96, v96")
    A("    v_exp_f32 v97, v97")
    A("    s_nop 0")
    A("    v_add_f32 v96, 1.0, v96")
    A("    v_add_f32 v97, 1.0, v97")
    A("    v_rcp_f32 v96, v96")
    A("    v_rcp_f32 v97, v97")
    A("    s_nop 0")
    A("    v_cvt_pk_bf16_f32 v98, v96, v97")
    A("    v_lshlrev_b32 v96, 16, v98")
    A("    v_and_b32 v97, 0xffff0000, v98")
    A("    v_lshlrev_b32 v12, 3, v2")
    A("    s_mov_b32 exec_hi, 0xffff")
    A("    ds_write_b64 v12, v[96:97] offset:512")
    A("    s_mov_b64 exec, -1")
    A("    s_waitcnt lgkmcnt(0)")
    stamp(10 if stamps == 2 else 8)
    A("L_waitg:")
    A("    s_barrier")
    A("    v_and_b32 v14, 15, v2")
    A("    v_mul_u32_u24 v12, 24, v14")
    A("    ds_read_b64 v[96:97], v12 offset:512")
    A("    ds_read_b64 v[98:99], v12 offset:520")
    A("    ds_read_b64 v[100:101], v12 offset:528")
    A("    s_waitcnt lgkmcnt(0)")
    A("    s_mov_b32 s24, 0")
    for i in range(NLOAD):
        b = 16 + 4 * i
        for d in range(3):
            A("    v_lshlrev_b32 v102, 16, v%d" % (b + d))
            A("    v_and_b32 v103, 0xffff0000, v%d" % (b + d))
            A("    v_mul_f32 v102, v102, v%d" % (96 + 2 * d))
            A("    v_mul_f32 v103, v103, v%d" % (97 + 2 * d))
            A("    v_cvt_pk_bf16_f32 v%d, v102, v103" % (b + d))
        if not nostore:
            A("    buffer_store_dwordx3 v[%d:%d], v3, s[20:23], s24 offen%s"
              % (b, b + 2, store_flags))
        A("    s_add_u32 s24, s24, %d" % lstep)
    if wstamps:
        A("    s_waitcnt vmcnt(0)")
        A("    s_memrealtime s[50:51]")
        A("    s_waitcnt lgkmcnt(0)")
        A("    v_lshl_add_u32 v9, s2, 4, v1")
        A("    v_lshlrev_b32 v9, 4, v9")
        A("    v_add_u32 v9, 0x100000, v9")
        A("    v_mov_b32 v4, s46")
        A("    v_mov_b32 v5, s48")
        A("    v_mov_b32 v6, s50")
        A("    v_mov_b32 v7, 0")
        A("    s_mov_b64 exec, 1")
        A("    global_store_dwordx4 v9, v[4:7], s[14:15]")
    if stamps == 1:
        A("    s_cmp_lg_u32 s26, 0")
        A("    s_cbranch_scc1 L_end")
        A("    s_waitcnt vmcnt(0)")
        stamp(10)
    A("L_end:")
    A("    s_endpgm")
    A('.section .rodata,"a"')
    A(".p2align 6")
    A(".amdhsa_kernel %s" % KNAME)
    A("  .amdhsa_next_free_vgpr 128")
    A("  .amdhsa_next_free_sgpr 56")
    A("  .amdhsa_accum_offset 128")
    A("  .amdhsa_group_segment_fixed_size 0")
    A("  .amdhsa_kernarg_size 48")
    A("  .amdhsa_user_sgpr_count 2")
    A("  .amdhsa_user_sgpr_kernarg_segment_ptr 1")
    A("  .amdhsa_system_sgpr_workgroup_id_x 1")
    A(".end_amdhsa_kernel")
    return "\n".join(L) + "\n"

if __name__ == "__main__":
    out = sys.argv[1] if len(sys.argv) > 1 else "standalone__channel_attn_se__vision.s"
    kw = {}
    for a in sys.argv[2:]:
        k, v = a.split("=")
        kw[k] = v if k.endswith("flags") else int(v)
    open(out, "w").write(gen(**kw))
```

```python
import sys

KNAME = "standalone__channel_attn_se__vision_kernel"
NWG = 256
WG_BYTES = 196608
WAVE_BYTES = 12288
NLOAD = 16
NREP = 16
REP_STRIDE = 512
CNT_BASE = 8192
CNT_STRIDE = 128
LOAD_FLAGS = ""
STORE_FLAGS = ""

def gen(load_flags=LOAD_FLAGS, store_flags=STORE_FLAGS, poll_at=11, stamps=False, mode=0, wstamps=0, nostore=0, psleep=1, apoll=0, goflag=0):
    L = []
    A = L.append
    def stamp(slot):
        if not stamps:
            return
        if slot == 2:
            A("    s_memrealtime s[44:45]")
            A("    s_waitcnt lgkmcnt(0)")
            return
        lab = "L_st%d" % slot
        A("    s_and_b32 s40, s2, 63")
        A("    s_cmp_lg_u32 s40, 3")
        A("    s_cbranch_scc1 %s" % lab)
        A("    s_memrealtime s[40:41]")
        A("    s_waitcnt lgkmcnt(0)")
        A("    s_sub_u32 s40, s40, s44")
        A("    s_lshr_b32 s41, s2, 6")
        A("    s_lshl_b32 s41, s41, 2")
        A("    s_mov_b64 s[42:43], exec")
        A("    s_mov_b64 exec, 1")
        A("    v_mov_b32 v110, s40")
        A("    v_mov_b32 v112, s41")
        base = {4: 0, 6: 4, 8: 8, 10: 12}[slot]
        A("    global_store_dword v112, v110, s[12:13] offset:%d" % (4 * base))
        A("    s_mov_b64 exec, s[42:43]")
        A("%s:" % lab)
    A("; @launch grid=(%d,1,1) block=(1024,1,1) lds=1024" % NWG)
    A('.amdgcn_target "amdgcn-amd-amdhsa--gfx950"')
    A(".text")
    A(".globl %s" % KNAME)
    A(".p2align 8")
    A(".type %s,@function" % KNAME)
    A("%s:" % KNAME)
    A("    s_cmp_ge_u32 s2, %d" % NWG)
    A("    s_cbranch_scc1 L_end")
    A("    s_load_dwordx4 s[4:7], s[0:1], 0")
    A("    s_load_dwordx4 s[8:11], s[0:1], 16")
    A("    s_load_dwordx4 s[12:15], s[0:1], 32")
    if wstamps:
        A("    s_memrealtime s[46:47]")
    A("    v_lshrrev_b32 v1, 6, v0")
    A("    v_and_b32 v2, 63, v0")
    A("    v_mul_u32_u24 v3, 12, v2")
    A("    v_readfirstlane_b32 s26, v1")
    A("    v_and_b32 v14, 15, v2")
    A("    v_mov_b32 v15, 0x3f80")
    A("    v_mov_b32 v13, 0x3f800000")
    for r in range(4):
        A("    v_mov_b32 v%d, 0" % (4 + r))
    for r in range(4):
        A("    v_cmp_eq_u32 vcc, %d, v14" % (2 * r))
        A("    s_nop 1")
        A("    v_cndmask_b32 v%d, v%d, v15, vcc" % (4 + r, 4 + r))
        A("    v_cmp_eq_u32 vcc, %d, v14" % (2 * r + 1))
        A("    s_nop 1")
        A("    v_cndmask_b32 v%d, v%d, v13, vcc" % (4 + r, 4 + r))
    for r in range(4):
        A("    v_mov_b32 v%d, 0" % (8 + r))
    for i in range(NLOAD):
        A("    v_mov_b32 v%d, 0" % (16 + 4 * i + 3))
    if mode == 0:
        wave_mul, wg_mul, lstep = WAVE_BYTES, WG_BYTES, 768
    elif mode == 1:
        wave_mul, wg_mul, lstep = 768, WG_BYTES, 12288
    else:
        wave_mul, wg_mul, lstep = 768, 12288, 12288 * NWG
    A("    s_mul_i32 s27, s26, %d" % wave_mul)
    A("    v_add_u32 v3, s27, v3")
    A("    s_mul_i32 s28, s2, %d" % wg_mul)
    A("    s_waitcnt lgkmcnt(0)")
    A("    s_add_u32 s16, s4, s28")
    A("    s_addc_u32 s17, s5, 0")
    A("    s_sub_u32 s18, %d, s28" % (NWG * WG_BYTES))
    A("    s_mov_b32 s19, 0x00020000")
    A("    s_add_u32 s20, s10, s28")
    A("    s_addc_u32 s21, s11, 0")
    A("    s_mov_b32 s22, s18")
    A("    s_mov_b32 s23, 0x00020000")
    if stamps:
        A("    s_cmp_lg_u32 s26, 0")
        A("    s_cbranch_scc1 L_nostamp0")
        stamp(2)
        A("L_nostamp0:")
    A("    s_cmp_lg_u32 s2, 0")
    A("    s_cbranch_scc1 L_nozero")
    A("    v_lshlrev_b32 v14, 4, v0")
    A("    v_mov_b32 v96, 0")
    A("    v_mov_b32 v97, 0")
    A("    v_mov_b32 v98, 0")
    A("    v_mov_b32 v99, 0")
    A("    global_store_dwordx4 v14, v[96:99], s[14:15] sc1")
    A("L_nozero:")
    A("    s_cmp_lg_u32 s26, 0")
    A("    s_cbranch_scc1 L_noweights")
    A("    s_mov_b32 s32, s6")
    A("    s_mov_b32 s33, s7")
    A("    s_mov_b32 s34, 1152")
    A("    s_mov_b32 s35, 0x00020000")
    A("    s_mov_b32 s36, s8")
    A("    s_mov_b32 s37, s9")
    A("    s_mov_b32 s38, 1152")
    A("    s_mov_b32 s39, 0x00020000")
    A("    v_mul_u32_u24 v14, 24, v2")
    A("    v_lshlrev_b32 v15, 2, v2")
    A("    buffer_load_dwordx3 v[80:82], v14, s[32:35], 0 offen")
    A("    buffer_load_dwordx3 v[84:86], v14, s[32:35], 0 offen offset:12")
    for r in range(6):
        A("    buffer_load_dword v%d, v15, s[36:39], 0 offen offset:%d" % (88 + r, 192 * r))
    A("L_noweights:")
    A("    s_mov_b32 s24, 0")
    for i in range(NLOAD):
        A("    buffer_load_dwordx3 v[%d:%d], v3, s[16:19], s24 offen%s"
          % (16 + 4 * i, 16 + 4 * i + 2, load_flags))
        A("    s_add_u32 s24, s24, %d" % lstep)
    A("    v_lshlrev_b32 v12, 2, v0")
    A("    v_mov_b32 v14, 0")
    A("    v_cmp_gt_u32 vcc, 128, v0")
    A("    s_and_saveexec_b64 s[30:31], vcc")
    A("    ds_write_b32 v12, v14")
    A("    s_mov_b64 exec, s[30:31]")
    A("    s_cmp_lg_u32 s2, 0")
    A("    s_cbranch_scc1 L_nozwait")
    A("    s_waitcnt vmcnt(%d)" % NLOAD)
    A("L_nozwait:")
    A("    s_waitcnt lgkmcnt(0)")
    A("    s_barrier")
    A("    s_or_b32 s29, s2, s26")
    A("    s_cmp_lg_u32 s29, 0")
    A("    s_cbranch_scc1 L_noflag")
    A("    v_mov_b32 v14, 0")
    A("    v_mov_b32 v15, 1")
    A("    s_mov_b64 s[30:31], exec")
    A("    s_mov_b64 exec, 1")
    A("    global_atomic_add v14, v15, s[12:13] sc1")
    A("    s_mov_b64 exec, s[30:31]")
    A("L_noflag:")
    A("    v_and_b32 v14, 15, v2")
    A("    v_mul_u32_u24 v12, 24, v14")
    A("    v_lshrrev_b32 v14, 4, v2")
    A("    v_lshl_add_u32 v12, v14, 4, v12")
    A("    v_mov_b32 v14, 0")
    extra = 0
    for i in range(NLOAD):
        A("    s_waitcnt vmcnt(%d)" % (NLOAD - 1 - i + extra))
        A("    v_mfma_f32_16x16x32_bf16 v[8:11], v[4:7], v[%d:%d], v[8:11]" % (16 + 4 * i, 16 + 4 * i + 3))
        if i == poll_at:
            A("    global_load_dword v13, v14, s[12:13] sc1")
            extra = 1
    if wstamps:
        A("    s_memrealtime s[48:49]")
    A("    s_nop 7")
    A("    s_mov_b32 exec_hi, 0")
    A("    ds_add_f32 v12, v8")
    A("    ds_add_f32 v12, v9 offset:4")
    A("    s_mov_b32 exec_lo, 0xffff")
    A("    ds_add_f32 v12, v10 offset:8")
    A("    ds_add_f32 v12, v11 offset:12")
    A("    s_mov_b64 exec, -1")
    A("    s_waitcnt lgkmcnt(0)")
    A("    s_barrier")
    A("    s_cmp_lg_u32 s26, 0")
    A("    s_cbranch_scc1 L_waitg")
    A("    s_waitcnt vmcnt(0)")
    stamp(4)
    A("    v_lshlrev_b32 v12, 2, v2")
    A("    ds_read_b32 v94, v12")
    A("    ds_read_b32 v95, v12 offset:256")
    A("    s_mov_b32 s31, 0")
    A("L_flagspin:")
    A("    v_readfirstlane_b32 s30, v13")
    A("    s_cmp_lg_u32 s30, 0")
    A("    s_cbranch_scc1 L_flagok")
    A("    s_add_u32 s31, s31, 1")
    A("    s_cmp_gt_u32 s31, 0x40000")
    A("    s_cbranch_scc1 L_flagok")
    A("    s_sleep 1")
    A("    global_load_dword v13, v14, s[12:13] sc1")
    A("    s_waitcnt vmcnt(0)")
    A("    s_branch L_flagspin")
    A("L_flagok:")
    A("    s_and_b32 s29, s2, %d" % (NREP - 1))
    A("    s_mul_i32 s30, s29, %d" % REP_STRIDE)
    A("    v_add_u32 v15, s30, v12")
    A("    s_waitcnt lgkmcnt(0)")
    A("    global_atomic_add_f32 v15, v94, s[14:15] sc1")
    A("    s_mov_b32 exec_hi, 0")
    A("    global_atomic_add_f32 v15, v95, s[14:15] offset:256 sc1")
    A("    s_mov_b64 exec, -1")
    A("    s_mul_i32 s30, s29, %d" % CNT_STRIDE)
    A("    s_add_u32 s30, s30, %d" % CNT_BASE)
    A("    v_mov_b32 v14, s30")
    A("    v_mov_b32 v15, 1")
    A("    v_lshlrev_b32 v12, 7, v2")
    A("    v_add_u32 v12, %d, v12" % CNT_BASE)
    A("    s_waitcnt vmcnt(0)")
    if stamps == 2:
        stamp(6)
    if goflag:
        A("    s_mov_b64 exec, 1")
        A("    global_atomic_add v13, v14, v15, s[14:15] sc0 sc1")
        A("    s_waitcnt vmcnt(0)")
        A("    v_readfirstlane_b32 s30, v13")
        A("    s_cmp_lg_u32 s30, %d" % (NWG // NREP - 1))
        A("    s_cbranch_scc1 L_gowait")
        A("    v_mov_b32 v14, 10240")
        A("    global_atomic_add v13, v14, v15, s[14:15] sc0 sc1")
        A("    s_waitcnt vmcnt(0)")
        A("    v_readfirstlane_b32 s30, v13")
        A("    s_cmp_lg_u32 s30, %d" % (NREP - 1))
        A("    s_cbranch_scc1 L_gowait")
        A("    s_mov_b32 exec_lo, 0xffff")
        A("    v_add_u32 v12, 4096, v12")
        A("    v_mov_b32 v15, 1")
        A("    global_atomic_add v12, v15, s[14:15] sc1")
        A("    s_mov_b64 exec, 1")
        A("L_gowait:")
        A("    s_lshl_b32 s30, s29, 7")
        A("    s_add_u32 s30, s30, 12288")
        A("    v_mov_b32 v12, s30")
        A("    s_mov_b32 s31, 0")
        A("L_poll:")
        A("    global_load_dword v13, v12, s[14:15] sc1")
        A("    s_waitcnt vmcnt(0)")
        A("    v_cmp_ne_u32 vcc, 1, v13")
        A("    s_cbranch_vccz L_polldone")
        A("    s_add_u32 s31, s31, 1")
        A("    s_cmp_gt_u32 s31, 0x40000")
        A("    s_cbranch_scc1 L_polldone")
        A("    s_sleep %d" % psleep)
        A("    s_branch L_poll")
    else:
        A("    s_mov_b64 exec, 1")
        A("    global_atomic_add v14, v15, s[14:15] sc1")
        A("    s_mov_b32 exec_lo, 0xffff")
        A("    s_mov_b32 s31, 0")
        A("L_poll:")
        if apoll:
            A("    v_mov_b32 v15, 0")
            A("    global_atomic_add v13, v12, v15, s[14:15] sc0 sc1")
        else:
            A("    global_load_dword v13, v12, s[14:15] sc1")
        A("    s_waitcnt vmcnt(0)")
        A("    v_cmp_ne_u32 vcc, %d, v13" % (NWG // NREP))
        A("    s_cbranch_vccz L_polldone")
        A("    s_add_u32 s31, s31, 1")
        A("    s_cmp_gt_u32 s31, 0x40000")
        A("    s_cbranch_scc1 L_polldone")
        A("    s_sleep %d" % psleep)
        A("    s_branch L_poll")
    A("L_polldone:")
    A("    s_mov_b64 exec, -1")
    stamp(8 if stamps == 2 else 6)
    A("    v_lshlrev_b32 v12, 3, v2")
    A("    v_add_u32 v14, 4096, v12")
    for r in range(NREP):
        base = "v12" if r < 8 else "v14"
        A("    global_load_dwordx2 v[%d:%d], %s, s[14:15] offset:%d sc1"
          % (96 + 2 * r, 97 + 2 * r, base, REP_STRIDE * (r % 8)))
    A("    s_waitcnt vmcnt(0)")
    step = 1
    while step < NREP:
        for r in range(0, NREP, 2 * step):
            A("    v_add_f32 v%d, v%d, v%d" % (96 + 2 * r, 96 + 2 * r, 96 + 2 * (r + step)))
            A("    v_add_f32 v%d, v%d, v%d" % (97 + 2 * r, 97 + 2 * r, 97 + 2 * (r + step)))
        step *= 2
    A("    v_mul_f32 v96, 0x36800000, v96")
    A("    v_mul_f32 v97, 0x36800000, v97")
    A("    v_cvt_pk_bf16_f32 v98, v96, v97")
    A("    v_lshlrev_b32 v96, 16, v98")
    A("    v_and_b32 v97, 0xffff0000, v98")
    for r in range(6):
        src0 = 80 + r // 2
        src1 = 84 + r // 2
        if r % 2 == 0:
            A("    v_lshlrev_b32 v106, 16, v%d" % src0)
            A("    v_lshlrev_b32 v107, 16, v%d" % src1)
        else:
            A("    v_and_b32 v106, 0xffff0000, v%d" % src0)
            A("    v_and_b32 v107, 0xffff0000, v%d" % src1)
        A("    v_mul_f32 v%d, v96, v106" % (100 + r))
        A("    v_fmac_f32 v%d, v97, v107" % (100 + r))
    for st in (1, 2, 4, 8):
        for r in range(6):
            A("    v_add_f32_dpp v%d, v%d, v%d row_ror:%d row_mask:0xf bank_mask:0xf"
              % (106 + r, 100 + r, 100 + r, st))
        A("    s_nop 1")
        for r in range(6):
            A("    v_mov_b32 v%d, v%d" % (100 + r, 106 + r))
        A("    s_nop 1")
    for op in ("v_permlane16_swap_b32", "v_permlane32_swap_b32"):
        for r in range(6):
            A("    v_mov_b32 v%d, v%d" % (106 + r, 100 + r))
        A("    s_nop 1")
        for r in range(6):
            A("    %s v%d, v%d" % (op, 100 + r, 106 + r))
        A("    s_nop 1")
        for r in range(6):
            A("    v_add_f32 v%d, v%d, v%d" % (100 + r, 100 + r, 106 + r))
    A("    s_mov_b32 s30, 0xbfb8aa3b")
    for r in range(0, 6, 2):
        A("    v_cvt_pk_bf16_f32 v106, v%d, v%d" % (100 + r, 101 + r))
        A("    v_lshlrev_b32 v%d, 16, v106" % (100 + r))
        A("    v_and_b32 v%d, 0xffff0000, v106" % (101 + r))
    for r in range(6):
        A("    v_mul_f32 v%d, s30, v%d" % (106 + r, 100 + r))
    for r in range(6):
        A("    v_exp_f32 v%d, v%d" % (106 + r, 106 + r))
    A("    s_nop 0")
    for r in range(6):
        A("    v_add_f32 v%d, 1.0, v%d" % (106 + r, 106 + r))
    for r in range(6):
        A("    v_rcp_f32 v%d, v%d" % (106 + r, 106 + r))
    A("    s_nop 0")
    for r in range(6):
        A("    v_mul_f32 v%d, v%d, v%d" % (100 + r, 100 + r, 106 + r))
    for r in range(0, 6, 2):
        A("    v_cvt_pk_bf16_f32 v106, v%d, v%d" % (100 + r, 101 + r))
        A("    v_lshlrev_b32 v%d, 16, v106" % (100 + r))
        A("    v_and_b32 v%d, 0xffff0000, v106" % (101 + r))
    A("    v_mov_b32 v96, 0")
    A("    v_mov_b32 v97, 0")
    for r in range(6):
        A("    v_lshlrev_b32 v106, 16, v%d" % (88 + r))
        A("    v_and_b32 v107, 0xffff0000, v%d" % (88 + r))
        A("    v_fmac_f32 v96, v%d, v106" % (100 + r))
        A("    v_fmac_f32 v97, v%d, v107" % (100 + r))
    A("    v_cvt_pk_bf16_f32 v98, v96, v97")
    A("    v_lshlrev_b32 v96, 16, v98")
    A("    v_and_b32 v97, 0xffff0000, v98")
    A("    v_mul_f32 v96, s30, v96")
    A("    v_mul_f32 v97, s30, v97")
    A("    v_exp_f32 v96, v96")
    A("    v_exp_f32 v97, v97")
    A("    s_nop 0")
    A("    v_add_f32 v96, 1.0, v96")
    A("    v_add_f32 v97, 1.0, v97")
    A("    v_rcp_f32 v96, v96")
    A("    v_rcp_f32 v97, v97")
    A("    s_nop 0")
    A("    v_cvt_pk_bf16_f32 v98, v96, v97")
    A("    v_lshlrev_b32 v96, 16, v98")
    A("    v_and_b32 v97, 0xffff0000, v98")
    A("    v_lshlrev_b32 v12, 3, v2")
    A("    s_mov_b32 exec_hi, 0xffff")
    A("    ds_write_b64 v12, v[96:97] offset:512")
    A("    s_mov_b64 exec, -1")
    A("    s_waitcnt lgkmcnt(0)")
    stamp(10 if stamps == 2 else 8)
    A("L_waitg:")
    A("    s_barrier")
    A("    v_and_b32 v14, 15, v2")
    A("    v_mul_u32_u24 v12, 24, v14")
    A("    ds_read_b64 v[96:97], v12 offset:512")
    A("    ds_read_b64 v[98:99], v12 offset:520")
    A("    ds_read_b64 v[100:101], v12 offset:528")
    A("    s_waitcnt lgkmcnt(0)")
    A("    s_mov_b32 s24, 0")
    for i in range(NLOAD):
        b = 16 + 4 * i
        for d in range(3):
            A("    v_lshlrev_b32 v102, 16, v%d" % (b + d))
            A("    v_and_b32 v103, 0xffff0000, v%d" % (b + d))
            A("    v_mul_f32 v102, v102, v%d" % (96 + 2 * d))
            A("    v_mul_f32 v103, v103, v%d" % (97 + 2 * d))
            A("    v_cvt_pk_bf16_f32 v%d, v102, v103" % (b + d))
        if not nostore:
            A("    buffer_store_dwordx3 v[%d:%d], v3, s[20:23], s24 offen%s"
              % (b, b + 2, store_flags))
        A("    s_add_u32 s24, s24, %d" % lstep)
    if wstamps:
        A("    s_waitcnt vmcnt(0)")
        A("    s_memrealtime s[50:51]")
        A("    s_waitcnt lgkmcnt(0)")
        A("    v_lshl_add_u32 v9, s2, 4, v1")
        A("    v_lshlrev_b32 v9, 4, v9")
        A("    v_add_u32 v9, 0x100000, v9")
        A("    v_mov_b32 v4, s46")
        A("    v_mov_b32 v5, s48")
        A("    v_mov_b32 v6, s50")
        A("    v_mov_b32 v7, 0")
        A("    s_mov_b64 exec, 1")
        A("    global_store_dwordx4 v9, v[4:7], s[14:15]")
    if stamps == 1:
        A("    s_cmp_lg_u32 s26, 0")
        A("    s_cbranch_scc1 L_end")
        A("    s_waitcnt vmcnt(0)")
        stamp(10)
    A("L_end:")
    A("    s_endpgm")
    A('.section .rodata,"a"')
    A(".p2align 6")
    A(".amdhsa_kernel %s" % KNAME)
    A("  .amdhsa_next_free_vgpr 128")
    A("  .amdhsa_next_free_sgpr 56")
    A("  .amdhsa_accum_offset 128")
    A("  .amdhsa_group_segment_fixed_size 0")
    A("  .amdhsa_kernarg_size 48")
    A("  .amdhsa_user_sgpr_count 2")
    A("  .amdhsa_user_sgpr_kernarg_segment_ptr 1")
    A("  .amdhsa_system_sgpr_workgroup_id_x 1")
    A(".end_amdhsa_kernel")
    return "\n".join(L) + "\n"

if __name__ == "__main__":
    out = sys.argv[1] if len(sys.argv) > 1 else "standalone__channel_attn_se__vision.s"
    kw = {}
    for a in sys.argv[2:]:
        k, v = a.split("=")
        kw[k] = v if k.endswith("flags") else int(v)
    open(out, "w").write(gen(**kw))
```
